```python
import torch

def _softmax(x, axis=-1):
    return torch.softmax(x, dim=axis)
def _gelu(x):
    return torch.nn.functional.gelu(x, approximate="tanh")
def _silu(x):
    return torch.nn.functional.silu(x)
def _sigmoid(x):
    return torch.sigmoid(x)
def _layernorm(x, axis=-1, eps=1e-5):
    m = x.mean(dim=axis, keepdim=True)
    v = x.var(dim=axis, keepdim=True, unbiased=False)
    return (x - m) / torch.sqrt(v + eps)
def _scatter_add(tgt, idx, src, axis=0):
    return tgt.clone().index_add_(axis, idx, src)
def _segment_sum(src, seg, n):
    out = torch.zeros((n,) + src.shape[1:], dtype=src.dtype)
    return out.index_add_(0, seg, src)
def _pad(x, pw):
    flat = tuple(v for pair in reversed(pw) for v in pair)
    return torch.nn.functional.pad(x, flat)

kernel_name = 'concat_heads__ssm_conv_s4d__linear_kernel_hedgehog__prompt'

def setup_inputs():

    _w = (lambda a: (lambda t: t.to(torch.bfloat16) if t.is_floating_point() else t)(torch.as_tensor(a)))
    def _A_setup():
        Bsz, L, D, N = 1, 2048, 576, 128
        return {
            "u": _w((lambda *s: torch.randn(*s, dtype=torch.bfloat16) * 0.05)(Bsz, L, D)),
            "log_A_real": _w((lambda *s: torch.randn(*s, dtype=torch.bfloat16) * 3.2)(D, N) * 0.5),
            "A_imag": _w((lambda *s: torch.randn(*s, dtype=torch.bfloat16) * 0.2)(D, N) * 3.14),
            "C_real": _w((lambda *s: torch.randn(*s, dtype=torch.bfloat16) * 3.2)(D, N) / N ** 0.5),
            "C_imag": _w((lambda *s: torch.randn(*s, dtype=torch.bfloat16) * 3.2)(D, N) / N ** 0.5),
            "log_dt": _w((lambda *s: torch.randn(*s, dtype=torch.bfloat16) * 0.2)(D) * 0.5 - 4.0),
            "D_skip": _w((lambda *s: torch.randn(*s, dtype=torch.bfloat16) * 0.4)(D)),
        }
    _A_in = _A_setup()

    def _B_setup():
        B, S, D, H = 1, 2048, 576, 32
        Dh = D // H
        return {
            "x": _w((lambda *s: torch.randn(*s, dtype=torch.bfloat16) * 0.4)(B, S, D)),
            "wqkv": _w((lambda *s: torch.randn(*s, dtype=torch.bfloat16) * 0.4)(D, 3 * D)),
            "w_phi": _w((lambda *s: torch.randn(*s, dtype=torch.bfloat16) * 0.4)(H, Dh, Dh) * (Dh ** -0.5)),
            "wo": _w((lambda *s: torch.randn(*s, dtype=torch.bfloat16) * 0.05)(D, D)),
        }
    _B_in = _B_setup()

    return {
        "A_u": _A_in["u"],
        "A_log_A_real": _A_in["log_A_real"],
        "A_A_imag": _A_in["A_imag"],
        "A_C_real": _A_in["C_real"],
        "A_C_imag": _A_in["C_imag"],
        "A_log_dt": _A_in["log_dt"],
        "A_D_skip": _A_in["D_skip"],
        "B_x": _B_in["x"],
        "B_wqkv": _B_in["wqkv"],
        "B_w_phi": _B_in["w_phi"],
        "B_wo": _B_in["wo"],
    }

def reference(A_u, A_log_A_real, A_A_imag, A_C_real, A_C_imag, A_log_dt, A_D_skip, B_x, B_wqkv, B_w_phi, B_wo):
    def _A_ref(u, log_A_real, A_imag, C_real, C_imag, log_dt, D_skip):
        L = u.shape[1]
        dt = torch.exp(log_dt)
        A = -torch.exp(log_A_real) + 1j * A_imag
        C = (C_real + 1j * C_imag) * dt[:, None]
        pos = (lambda x, dt: x.to(dt))(torch.arange(L), log_dt.dtype)
        P = torch.exp((A * dt[:, None])[:, :, None] * pos[None, None, :])
        K = 2.0 * torch.einsum("dn,dnl->dl", C, P).real
        L2 = 2 * L
        u_t = (lambda x, *d: x.permute(*d))(u, 0, 2, 1)
        Kf = (lambda x, *a, **k: torch.fft.rfft(x.float(), *a, **k))(K, L2)
        Uf = (lambda x, *a, **k: torch.fft.rfft(x.float(), *a, **k))(u_t, L2)
        y = (lambda x, *a, **k: torch.fft.irfft(x, *a, **k).to(torch.bfloat16))(Uf * Kf[None, :, :], L2)[:, :, :L]
        y = (lambda x, *d: x.permute(*d))(y, 0, 2, 1)
        return y + u * D_skip[None, None, :]

    def _B_ref(x, wqkv, w_phi, wo):
        B, S, D = x.shape
        H = 32; Dh = D // H
        qkv = (lambda x, *d: x.permute(*d))((x @ wqkv).reshape(B, S, 3, H, Dh), 2, 0, 3, 1, 4)
        q, k, v = qkv[0], qkv[1], qkv[2]
        pq = torch.einsum("bhsd,hdf->bhsf", q, w_phi)
        pk = torch.einsum("bhsd,hdf->bhsf", k, w_phi)
        phi_q = torch.concatenate([_softmax(pq, axis=-1), _softmax(-pq, axis=-1)], axis=-1)
        phi_k = torch.concatenate([_softmax(pk, axis=-1), _softmax(-pk, axis=-1)], axis=-1)
        kv = torch.einsum("bhsf,bhsd->bhfd", phi_k, v)
        z  = torch.einsum("bhsf->bhf", phi_k)
        num = torch.einsum("bhqf,bhfd->bhqd", phi_q, kv)
        den = torch.einsum("bhqf,bhf->bhq", phi_q, z)[..., None] + 1e-6
        o = num / den
        return (lambda x, *d: x.permute(*d))(o, 0, 2, 1, 3).reshape(B, S, D) @ wo

    a = _A_ref(A_u, A_log_A_real, A_A_imag, A_C_real, A_C_imag, A_log_dt, A_D_skip)
    b = _B_ref(B_x, B_wqkv, B_w_phi, B_wo)
    return torch.concatenate([a, b], axis=-1)
```

```python
import re

TRANS = ("v_exp_f32","v_log_f32","v_rcp_f32","v_rsq_f32","v_sqrt_f32","v_sin_f32","v_cos_f32","v_rcp_iflag_f32")

def parse_regs(tok):
    tok = tok.strip()
    tok = re.sub(r"^-", "", tok)
    m = re.match(r"^(?:abs\(|neg\(|\|)?([vsa])\[(\d+):(\d+)\]\)?\|?$", tok)
    if m: return {(m.group(1), i) for i in range(int(m.group(2)), int(m.group(3))+1)}
    m = re.match(r"^(?:abs\(|neg\(|\|)?([vsa])(\d+)\)?\|?$", tok)
    if m: return {(m.group(1), int(m.group(2)))}
    if tok in ("vcc","vcc_lo","vcc_hi"): return {("vcc",0)}
    if tok in ("exec","exec_lo","exec_hi"): return {("exec",0)}
    if tok == "m0": return {("m0",0)}
    return set()

def split_ops(s):
    out=[]; depth=0; cur=""
    for ch in s:
        if ch in "[(": depth+=1
        if ch in "])": depth-=1
        if ch=="," and depth==0: out.append(cur); cur=""
        else: cur+=ch
    if cur.strip(): out.append(cur)
    return [o.strip() for o in out]

class Ins:
    def __init__(self, text):
        self.text = text
        t = text.split(";")[0].strip()
        self.is_label = t.endswith(":")
        self.is_dir = t.startswith(".") and not self.is_label
        self.empty = (t == "")
        self.op = ""; self.w=set(); self.r=set(); self.kind="other"
        self.A=set(); self.B=set(); self.C=set(); self.passes=0; self.storedata=set(); self.wide=False
        self.lanesel=set(); self.target=None; self.dpp=False; self.ldsdma=False
        if self.is_label or self.is_dir or self.empty:
            if self.is_label: self.name=t[:-1]
            return
        parts = t.split(None,1)
        op = parts[0]; self.op = op
        rest = parts[1] if len(parts)>1 else ""
        ops = split_ops(rest)
        if ops:
            last = ops[-1].split()
            mods = last[1:]
            ops[-1] = last[0] if last else ""
        else: mods=[]
        R = [parse_regs(o) for o in ops]
        base = re.sub(r"_(e32|e64|dpp|sdwa)$","",op)
        if op.startswith("v_mfma"):
            self.kind="mfma"; self.w=R[0]; self.A=R[1]; self.B=R[2]; self.C=R[3]; self.r=R[1]|R[2]|R[3]
            self.passes = 8 if "32x32" in op else 4
        elif op.startswith("v_"):
            self.kind="valu"
            self.dpp = ("dpp" in op) or any(m.startswith(("row_","quad_perm","wave_")) for m in mods)
            if base.startswith("v_cmp"):
                self.w=R[0]; self.r=set().union(*R[1:])
                if base.startswith("v_cmpx"): self.w=self.w|{("exec",0)}
            elif base in ("v_add_co_u32","v_sub_co_u32","v_subrev_co_u32","v_addc_co_u32","v_subb_co_u32","v_mad_u64_u32","v_div_scale_f32"):
                self.w=R[0]|R[1]; self.r=set().union(*R[2:])
            elif "permlane" in base and "swap" in base:
                self.w=R[0]|R[1]; self.r=R[0]|R[1]
            else:
                self.w=R[0] if R else set(); self.r=set().union(*R[1:]) if len(R)>1 else set()
                if base in ("v_fmac_f32","v_dot2c_f32_bf16","v_pk_fmac_f16","v_writelane_b32","v_mov_b32_dpp") or "d16" in base: self.r=self.r|self.w
                if base=="v_cndmask_b32" and len(R)==3: self.r=self.r|{("vcc",0)}
                if base in ("v_readlane_b32","v_writelane_b32"): self.lanesel=R[2]
        elif op.startswith("ds_"):
            self.kind="ds"
            if "read" in op or "rtn" in op or "permute" in op or "swizzle" in op:
                self.w=R[0]; self.r=set().union(*R[1:])
            else: self.r=set().union(*R)
        elif op.startswith("buffer_") or op.startswith("global_"):
            self.kind="vmem"
            islds = ("lds" in mods) or ("_lds_" in op)
            self.ldsdma = islds
            if op in ("buffer_wbl2","buffer_inv"): pass
            elif "load" in op and not islds:
                self.w=R[0]; self.r=set().union(*R[1:])
                if "d16" in op: self.r=self.r|self.w
            elif islds:
                self.r=set().union(*R)|{("m0",0)}
            else:
                self.r=set().union(*R)
                d = R[0] if op.startswith("buffer_") else R[1]
                self.storedata=d; self.wide = op.endswith(("x3","x4"))
                if "atomic" in op and "sc0" in mods: self.w=R[0]
        elif op.startswith("s_"):
            self.kind="salu"
            if op.startswith(("s_cbranch","s_branch")):
                self.target=ops[0]
            elif op.startswith(("s_cmp","s_waitcnt","s_nop","s_barrier","s_endpgm","s_sleep","s_setprio","s_bitcmp")):
                self.r=set().union(*R) if R else set()
            else:
                self.w=R[0] if R else set(); self.r=set().union(*R[1:]) if len(R)>1 else set()
                if "saveexec" in op: self.w=self.w|{("exec",0)}
    def states(self):
        if self.is_label or self.is_dir or self.empty: return 0
        if self.op=="s_nop": return int(self.text.split(";")[0].split()[1],0)+1
        return 1

def vg(s): return {x for x in s if x[0] in "va"}
def sg(s): return {x for x in s if x[0] in ("s","vcc")}

def need(p, c):
    n=0
    base_p = re.sub(r"_(e32|e64)$","",p.op)
    if p.kind=="valu":
        if base_p in TRANS and c.kind in ("valu","mfma") and re.sub(r"_(e32|e64)$","",c.op) not in TRANS and (p.w & c.r): n=max(n,1)
        if base_p in TRANS and c.kind in ("ds","vmem") and (p.w & c.r): n=max(n,1)
        if c.kind=="mfma" and (vg(p.w) & c.r): n=max(n,2)
        if c.kind=="valu" and c.op.startswith(("v_readlane","v_readfirstlane")) and (vg(p.w)&c.r): n=max(n,1)
        if c.kind=="valu" and "permlane" in c.op and (vg(p.w)&c.r): n=max(n,2)
        if c.kind=="valu" and c.dpp and (vg(p.w)&c.r): n=max(n,2)
        if c.kind=="valu" and (sg(p.w)&c.r): n=max(n,2)
        if c.kind=="valu" and (sg(p.w)&c.lanesel): n=max(n,4)
        if c.kind=="vmem" and (sg(p.w)&c.r): n=max(n,5)
        if c.kind=="salu" and (sg(p.w)&c.r): n=max(n,1)
        if ("exec",0) in p.w:
            if c.kind=="mfma": n=max(n,4)
            if c.kind=="valu" and (c.dpp): n=max(n,5)
            if c.kind=="valu" and (c.op.startswith(("v_readlane","v_readfirstlane","v_writelane")) or "permlane" in c.op): n=max(n,4)
        if ("op_sel" in p.text and p.op.startswith("v_cvt")) and c.kind=="valu" and (p.w&(c.r|c.w)): n=max(n,1)
    if p.kind=="mfma":
        P=p.passes
        big={4:8,8:12}[P]
        if c.kind=="mfma":
            if p.w & (c.A|c.B): n=max(n,big)
            if p.w & c.C:
                if not (p.w==c.C and p.passes==c.passes): n=max(n,{4:6,8:10}[P])
            if (p.w & c.w) and not (p.w & c.C): n=max(n,big)
        elif c.kind in ("valu","ds","vmem"):
            if p.w & (c.r|c.w): n=max(n,big)
            if c.kind=="valu" and (p.C & c.w): n=max(n,{4:3,8:7}[P])
    if p.kind=="vmem" and p.wide and (p.storedata & c.w):
        n=max(n,2 if c.kind=="valu" else 1)
    if p.kind=="salu" and ("m0",0) in p.w and c.ldsdma: n=max(n,1)
    return n

class Asm:
    def __init__(self): self.ins=[]
    def e(self, s):
        for line in s.strip("\n").split("\n"):
            self.ins.append(Ins("    "+line.strip() if not line.strip().endswith(":") else line.strip()))
    def label(self, n): self.ins.append(Ins(n+":"))
    def raw(self, s): self.ins.append(Ins(s))
    def _check_seq(self, before, c):
        d=0; extra=0
        for p in reversed(before):
            if p.states()==0: continue
            if d>=20: break
            k=need(p,c)
            if k>d: extra=max(extra,k-d)
            d+=p.states()
        return extra
    def pad(self):
        out=[]
        for c in self.ins:
            if c.states()>0:
                x=self._check_seq(out[-40:],c)
                while x>0:
                    k=min(x,16); out.append(Ins(f"    s_nop {k-1}")); x-=k
            out.append(c)
        changed=True
        while changed:
            changed=False
            lab={c.name:i for i,c in enumerate(out) if c.is_label}
            for i,b in enumerate(out):
                if b.target is None or b.target not in lab: continue
                j=lab[b.target]
                seq=list(out[max(0,i-40):i+1])
                d=0
                for c in out[j:j+60]:
                    if c.states()==0: continue
                    if d>=20: break
                    x=self._check_seq(seq,c)
                    if x>0:
                        out.insert(i, Ins(f"    s_nop {x-1}"))
                        changed=True; break
                    seq.append(c); d+=c.states()
                    if c.op in ("s_branch","s_endpgm"): break
                if changed: break
        self.ins=out
    def text(self): return "\n".join(i.text for i in self.ins)+"\n"
```

```python
RS=17664; MOFF=4224; U1OFF=8448; U0OFF=13024
LOG2E=0x3fb8aa3b; NLOG2E=0xbfb8aa3b; INV2PI=0x3e22f983
XROWS = {0:[0],1:[1],2:[2],3:[3],4:[4],5:[5],6:[6],7:[7],256:[8],258:[9],260:[10,12],262:[13],264:[14],
         512:[16],516:[17],520:[18],768:[20],772:[21],776:[22],1024:[24],1032:[25],1280:[26],1288:[27],
         1536:[28],1544:[29],1792:[30],1800:[31]}
def pr(r): return f"v[{r}:{r+1}]"
def q4(r): return f"v[{r}:{r+3}]"

def gen_a(a, NB):
    e=a.e
    a.label("A_entry")
    e(f"""
    s_sub_u32 s3, s2, {NB}
    s_and_b32 s4, s3, 7
    s_lshr_b32 s5, s3, 3
    s_mul_i32 s4, s4, 18
    s_add_u32 s4, s4, s5
    v_lshrrev_b32 v1, 6, v0
    v_and_b32 v2, 63, v0
    v_readfirstlane_b32 s6, v1
    s_lshl_b32 s7, s4, 2
    s_add_u32 s7, s7, s6
    s_lshl_b32 s8, s7, 8
    v_lshl_add_u32 v3, v2, 2, s8
    s_lshl_b32 s9, s7, 1
    v_mov_b32 v28, s9
    s_mul_i32 s10, s6, {RS}
    s_lshl_b32 s11, s4, 3
    v_mul_u32_u24 v29, {8*1152}, v0
    v_add_u32 v29, s11, v29
    v_subrev_u32 v30, 1152, v29
    s_waitcnt lgkmcnt(0)
    global_load_dword v22, v3, s[18:19]
    global_load_ushort v26, v28, s[26:27]
    global_load_dword v23, v3, s[20:21]
    global_load_dword v24, v3, s[22:23]
    global_load_dword v25, v3, s[24:25]
    global_load_ushort v27, v28, s[28:29]
    s_mov_b32 s44, s16
    s_mov_b32 s45, s17
    s_mov_b32 s46, {2048*1152}
    s_mov_b32 s47, 0x00020000
    s_mov_b32 s48, s38
    s_mov_b32 s49, s39
    s_mov_b32 s50, {2048*2304}
    s_mov_b32 s51, 0x00020000
    s_movk_i32 s12, 4608
    buffer_load_dwordx2 v[4:5], v30, s[44:47], 0 offen
    """)
    for r in range(8):
        so = "0" if r<4 else "s12"
        e(f"buffer_load_dwordx2 {pr(6+2*r)}, v29, s[44:47], {so} offen offset:{1152*(r%4)}")
    e(f"""
    v_lshl_add_u32 v58, v2, 2, s10
    v_and_b32 v60, 31, v2
    v_lshrrev_b32 v61, 5, v2
    v_mul_u32_u24 v59, 272, v60
    v_lshl_add_u32 v59, v61, 4, v59
    v_add_u32 v59, s10, v59
    """)
    for i in range(16): e(f"v_mov_b32 v{80+i}, 0")
    e(f"""
    s_waitcnt vmcnt(9)
    v_lshlrev_b32 v26, 16, v26
    v_mul_f32 v26, {LOG2E:#x}, v26
    v_exp_f32 v26, v26
    v_lshlrev_b32 v62, 16, v22
    v_and_b32 v63, 0xffff0000, v22
    v_cvt_pk_bf16_f32 v26, v26, v26
    v_mul_f32 v62, {LOG2E:#x}, v62
    v_mul_f32 v63, {LOG2E:#x}, v63
    v_exp_f32 v62, v62
    v_exp_f32 v63, v63
    v_lshlrev_b32 v28, 16, v26
    v_lshlrev_b32 v27, 16, v27
    v_cvt_pk_bf16_f32 v62, v62, v63
    v_add_f32 v29, v28, v28
    v_lshlrev_b32 v30, 16, v62
    v_and_b32 v34, 0xffff0000, v62
    v_mul_f32 v30, v30, v28
    v_mul_f32 v34, v34, v28
    v_mul_f32 v30, {NLOG2E:#x}, v30
    v_mul_f32 v34, {NLOG2E:#x}, v34
    v_lshlrev_b32 v31, 16, v23
    v_and_b32 v35, 0xffff0000, v23
    v_mul_f32 v31, v31, v28
    v_mul_f32 v35, v35, v28
    v_mul_f32 v31, {INV2PI:#x}, v31
    v_mul_f32 v35, {INV2PI:#x}, v35
    v_lshlrev_b32 v32, 16, v24
    v_and_b32 v36, 0xffff0000, v24
    v_lshlrev_b32 v33, 16, v25
    v_and_b32 v37, 0xffff0000, v25
    v_mul_f32 v32, v32, v29
    v_mul_f32 v36, v36, v29
    v_mul_f32 v33, v33, v29
    v_mul_f32 v37, v37, v29
    v_xor_b32 v33, 0x80000000, v33
    v_xor_b32 v37, 0x80000000, v37
    s_mov_b32 s13, 2
    v_mov_b32 v68, 0x3f80
    """)
    a.label("A_pass")
    for (w,mul) in [(38,None),(40,0x41000000),(42,0x43800000)]:
        if mul is None:
            e(f"v_exp_f32 v44, v30\nv_fract_f32 v45, v31")
        else:
            e(f"v_mul_f32 v44, {mul:#x}, v30\nv_mul_f32 v45, {mul:#x}, v31\nv_exp_f32 v44, v44\nv_fract_f32 v45, v45")
        e(f"v_cos_f32 v{w}, v45\nv_sin_f32 v{w+1}, v45")
        e(f"v_mul_f32 v{w}, v{w}, v44\nv_mul_f32 v{w+1}, v{w+1}, v44")
    cv=[0]
    def put(z, rows):
        t=60+(cv[0]%8); cv[0]+=1
        e(f"v_cvt_pk_bf16_f32 v{t}, v{z}, v{z+1}")
        for r in rows: e(f"ds_write_b32 v58, v{t} offset:{r*272}")
    def cmul(d, z, w, conj):
        ng = "neg_hi:[0,1,0]" if conj else "neg_lo:[0,1,0]"
        e(f"v_pk_mul_f32 v[44:45], {pr(z)}, {pr(w)} op_sel:[0,0] op_sel_hi:[1,0]")
        e(f"v_pk_fma_f32 {pr(d)}, {pr(z)}, {pr(w)}, v[44:45] op_sel:[1,1,0] op_sel_hi:[0,1,1] {ng}")
    put(32, XROWS[0])
    save={2:50,4:52,6:54}
    prev=32
    for p in range(1,8):
        d = save.get(p, 48)
        cmul(d, prev, 38, True); put(d, XROWS[p]); prev=d
    cmul(50,50,42,True); put(50,XROWS[258])
    cmul(54,54,42,True); put(54,XROWS[262])
    for p in (260,516,772):
        cmul(52,52,42,True); put(52,XROWS[p])
    cmul(48,32,40,True)
    prev=32
    for h in range(1,8):
        cmul(56,prev,42,True); put(56,XROWS[256*h]); prev=56
        cmul(48,48,42,True); put(48,XROWS[256*h+8])
    e(f"ds_write_b32 v58, v68 offset:{32*272}")
    put(40,[33])
    prev=40
    for j in range(2,32):
        cmul(46,prev,40,False); put(46,[32+j]); prev=46
    for half in range(2):
        for s in range(4):
            st=half*4+s
            e(f"ds_read_b128 {q4(96+8*st)}, v59 offset:{32*st}")
            e(f"ds_read_b128 {q4(100+8*st)}, v59 offset:{32*272+32*st}")
        if half==0:
            e("v_mov_b32 v30, v34\nv_mov_b32 v31, v35\nv_mov_b32 v32, v36\nv_mov_b32 v33, v37")
    for st in range(8):
        e(f"s_waitcnt lgkmcnt({min(15,14-2*st)})")
        e(f"v_mfma_f32_32x32x16_bf16 v[80:95], {q4(96+8*st)}, {q4(100+8*st)}, v[80:95]")
    e("""
    s_sub_u32 s13, s13, 1
    s_cmp_lg_u32 s13, 0
    s_cbranch_scc1 A_pass
    """)
    e(f"""
    v_and_b32 v60, 31, v2
    v_lshrrev_b32 v61, 5, v2
    v_lshlrev_b32 v62, 4, v60
    v_sub_u32 v62, s10, v62
    v_lshlrev_b32 v63, 3, v61
    v_sub_u32 v64, v62, v63
    v_add_u32 v64, 3576, v64
    v_lshlrev_b32 v63, 9, v61
    v_sub_u32 v65, v62, v63
    v_sub_u32 v66, v65, v63
    v_add_u32 v65, 3056, v65
    v_add_u32 v66, 1520, v66
    v_add_u32 v67, {MOFF+4}, v64
    v_add_u32 v68, {MOFF+4}, v65
    v_add_u32 v69, {MOFF+4}, v66
    v_cmp_eq_u32 vcc, 0, v2
    v_cndmask_b32 v27, 0, v27, vcc
    v_and_b32 v60, 1, v2
    v_cmp_eq_u32 vcc, 0, v60
    s_mov_b32 s14, 0x05040100
    s_mov_b32 s15, 0x07060302
    v_lshlrev_b32 v70, 4, v0
    v_add_u32 v70, {448+U1OFF}, v70
    v_add_f32 v80, v80, v27
    v_cndmask_b32 v30, v93, v92, vcc
    v_cndmask_b32 v31, v95, v94, vcc
    v_cvt_pk_bf16_f32 v96, v83, v82
    v_cvt_pk_bf16_f32 v97, v81, v80
    v_cvt_pk_bf16_f32 v98, v86, v85
    v_cvt_pk_bf16_f32 v99, v84, v84
    v_cvt_pk_bf16_f32 v100, v90, v90
    v_cvt_pk_bf16_f32 v101, v89, v89
    v_cvt_pk_bf16_f32 v102, v89, v88
    v_cvt_pk_bf16_f32 v103, v88, v88
    v_cvt_pk_bf16_f32 v104, v93, v93
    v_cvt_pk_bf16_f32 v105, v93, v30
    v_cvt_pk_bf16_f32 v106, v92, v92
    v_cvt_pk_bf16_f32 v107, v92, v92
    v_cvt_pk_bf16_f32 v108, v95, v95
    v_cvt_pk_bf16_f32 v109, v95, v31
    v_cvt_pk_bf16_f32 v110, v94, v94
    v_cvt_pk_bf16_f32 v111, v94, v94
    ds_write_b64 v64, v[96:97] offset:512
    ds_write_b64 v64, v[98:99]
    ds_write_b128 v65, v[100:103]
    ds_write_b128 v66, v[104:107] offset:512
    ds_write_b128 v66, v[108:111]
    ds_write2_b32 v67, v96, v97 offset0:128 offset1:129
    ds_write2_b32 v67, v98, v99 offset0:0 offset1:1
    ds_write2_b32 v68, v100, v101 offset0:0 offset1:1
    ds_write2_b32 v68, v102, v103 offset0:2 offset1:3
    ds_write2_b32 v69, v104, v105 offset0:128 offset1:129
    ds_write2_b32 v69, v106, v107 offset0:130 offset1:131
    ds_write2_b32 v69, v108, v109 offset0:0 offset1:1
    ds_write2_b32 v69, v110, v111 offset0:2 offset1:3
    v_mov_b32 v32, 0
    v_mov_b32 v33, 0
    v_lshl_add_u32 v34, v2, 3, s10
    s_mov_b64 exec, 0xffff
    ds_write_b32 v58, v32 offset:4096
    ds_write_b32 v58, v32 offset:{MOFF+4100}
    s_mov_b32 exec_lo, -1
    s_mov_b32 exec_hi, 0x00ffffff
    ds_write_b64 v34, v[32:33] offset:{U1OFF}
    ds_write_b64 v34, v[32:33] offset:{U0OFF}
    s_mov_b64 exec, -1
    s_waitcnt vmcnt(0)
    """)
    def row(r,dw): return 6+2*r+dw
    for c4 in range(4):
        sel = "s14" if c4%2==0 else "s15"; dw=c4//2
        for k in range(4):
            e(f"v_perm_b32 v{112+8*c4+k}, v{row(2*k+1,dw)}, v{row(2*k,dw)}, {sel}")
            e(f"v_perm_b32 v{116+8*c4+k}, v{row(2*k,dw)}, v{row(2*k-1,dw)}, {sel}")
    e("s_barrier")
    for c4 in range(4):
        e(f"ds_write_b128 v70, {q4(112+8*c4)} offset:{c4*RS}")
        e(f"ds_write_b128 v70, {q4(116+8*c4)} offset:{c4*RS+U0OFF-U1OFF}")
    e(f"""
    v_and_b32 v60, 15, v2
    v_lshrrev_b32 v61, 4, v2
    v_lshlrev_b32 v61, 4, v61
    v_add_u32 v61, s10, v61
    v_lshrrev_b32 v62, 1, v60
    v_lshl_add_u32 v72, v62, 6, v61
    v_mov_b32 v63, {U1OFF+448}
    v_mov_b32 v64, {U0OFF+448}
    v_cndmask_b32 v63, v63, v64, vcc
    v_add_u32 v72, v72, v63
    v_lshlrev_b32 v62, 2, v60
    v_sub_u32 v73, v61, v62
    v_mov_b32 v63, {4092-3584}
    v_mov_b32 v64, {MOFF+4096-3584}
    v_cndmask_b32 v63, v63, v64, vcc
    v_add_u32 v73, v73, v63
    """)
    for i in range(32): e(f"v_mov_b32 v{224+i}, 0")
    e("s_waitcnt lgkmcnt(0)\ns_barrier")
    def reads(S):
        L=[]
        for i in range(8):
            L.append(f"ds_read_b128 {q4(S+4*i)}, v72 offset:{512*i}")
            L.append(f"ds_read_b64 {pr(S+32+4*i)}, v73 offset:{3584-512*i}")
            L.append(f"ds_read_b64 {pr(S+34+4*i)}, v73 offset:{3584-512*i+8}")
        return L
    L=reads(96)
    for i,x in enumerate(L):
        e(x)
        if i==11: e("s_waitcnt lgkmcnt(4)")
    e("s_mov_b32 s13, 4")
    a.label("A_conv")
    for (S,Sn) in [(96,160),(160,96)]:
        e("v_subrev_u32 v72, 64, v72\nv_subrev_u32 v73, 64, v73\ns_waitcnt lgkmcnt(0)")
        L=reads(Sn)
        pairs=[(ee,q) for q in range(8) for ee in range(8-q)]
        for i,(ee,q) in enumerate(pairs):
            J=ee+q
            e(f"v_mfma_f32_16x16x32_bf16 {q4(224+4*J)}, {q4(S+4*ee)}, {q4(S+32+4*q)}, {q4(224+4*J)}")
            if i<24: e(L[i])
    e("""
    s_sub_u32 s13, s13, 1
    s_cmp_lg_u32 s13, 0
    s_cbranch_scc1 A_conv
    """)
    e(f"""
    v_and_b32 v60, 15, v2
    v_lshrrev_b32 v61, 4, v2
    v_lshlrev_b32 v61, 7, v61
    v_lshl_add_u32 v61, v60, 2, v61
    v_add_u32 v61, s10, v61
    v_lshlrev_b32 v70, 4, v0
    v_mul_u32_u24 v29, {8*2304}, v0
    v_add_u32 v29, s11, v29
    s_waitcnt lgkmcnt(0)
    """)
    for J in range(8):
        e(f"v_cvt_pk_bf16_f32 v{96+2*J}, v{224+4*J}, v{225+4*J}")
        e(f"v_cvt_pk_bf16_f32 v{97+2*J}, v{226+4*J}, v{227+4*J}")
        e(f"ds_write_b32 v61, v{96+2*J} offset:{512*J}")
        e(f"ds_write_b32 v61, v{97+2*J} offset:{512*J+64}")
    e("s_waitcnt lgkmcnt(0)\ns_barrier")
    for c4 in range(4): e(f"ds_read_b128 {q4(112+4*c4)}, v70 offset:{c4*RS}")
    e("s_movk_i32 s52, 4608\ns_movk_i32 s53, 9216\ns_movk_i32 s54, 13824\ns_waitcnt lgkmcnt(0)")
    for r in range(8):
        sel = "s14" if r%2==0 else "s15"; k=r//2
        e(f"v_perm_b32 v{128+2*r}, v{116+k}, v{112+k}, {sel}")
        e(f"v_perm_b32 v{129+2*r}, v{124+k}, v{120+k}, {sel}")
        so = ["0","s52","s53","s54"][r//2]
        e(f"buffer_store_dwordx2 {pr(128+2*r)}, v29, s[48:51], {so} offen offset:{2304*(r%2)}")
    e("s_endpgm")
```

```python
LOG2E=0x3fb8aa3b; NLOG2E=0xbfb8aa3b
WRING=32768; PG9=73728
WBD=73728; WBDZ=WBD+36*80
KVBD=WBD+2944
DUMP=KVBD+4480
P9R=DUMP+72+8
PH=0; VV=21504
WS_PART=0; WS_O=0x100000; WS_F1=0x400000; WS_F2=0x410000; WS_DBG=0x800000
BIG=0x7f000000
def pr(r): return f"v[{r}:{r+1}]"
def q4(r): return f"v[{r}:{r+3}]"
def xf(t,n): return 112+8*t+4*n
def acc(T,n): return 72+8*T+4*n
def wf(b,T): return 32+20*b+4*T

class VQ:
    def __init__(s,a): s.q=[]; s.a=a
    def add(s,tag): s.q.append(tag)
    def n_after(s,tags):
        idx=max(i for i,t in enumerate(s.q) if t in tags)
        return len(s.q)-1-idx
    def wait(s,*tags,extra=""):
        n=s.n_after(tags); assert n<=63
        s.a.e(f"s_waitcnt vmcnt({n}){extra}")

def softmax(e, Z, outs, tm, ts):
    z=[Z[i//4]+i%4 for i in range(18)]
    e(f"v_max3_f32 v{tm}, v{z[0]}, v{z[1]}, v{z[2]}")
    for i in range(3,17,2): e(f"v_max3_f32 v{tm}, v{tm}, v{z[i]}, v{z[i+1]}")
    e(f"v_max_f32 v{tm}, v{tm}, v{z[17]}")
    e(f"v_mul_f32 v{tm}, {NLOG2E:#x}, v{tm}")
    for i in range(0,18,2):
        e(f"v_pk_fma_f32 {pr(z[i])}, {pr(z[i])}, s[72:73], {pr(tm)} op_sel_hi:[1,1,0]")
    for i in range(18): e(f"v_exp_f32 v{z[i]}, v{z[i]}")
    e(f"v_pk_add_f32 {pr(ts)}, {pr(z[0])}, {pr(z[2])}")
    for i in range(4,18,2): e(f"v_pk_add_f32 {pr(ts)}, {pr(ts)}, {pr(z[i])}")
    e(f"v_add_f32 v{ts}, v{ts}, v{ts+1}")
    e(f"v_rcp_f32 v{ts}, v{ts}")
    for i in range(0,18,2):
        e(f"v_pk_mul_f32 {pr(z[i])}, {pr(z[i])}, {pr(ts)} op_sel_hi:[1,0]")
    for i in range(9):
        e(f"v_cvt_pk_bf16_f32 v{outs[i]}, v{z[2*i]}, v{z[2*i+1]}")

def gen_b(a, opts):
    e=a.e
    vq=VQ(a)
    stamp_n=[0]
    def stamp():
        if not opts.get("stamps"): return
        i=stamp_n[0]; stamp_n[0]+=1
        e(f"s_memrealtime s[{80+2*(i%1)}:{81+2*(i%1)}]\ns_waitcnt lgkmcnt(0)\nv_writelane_b32 v31, s80, {i}")
    RA,RB=opts.get("rot",(2,1))
    e(f"""
    s_and_b32 s10, s2, 7
    s_lshr_b32 s11, s2, 3
    s_lshr_b32 s4, s10, 1
    s_lshl_b32 s4, s4, 2
    s_and_b32 s12, s11, 3
    s_add_u32 s4, s4, s12
    s_and_b32 s5, s10, 1
    s_lshl_b32 s5, s5, 3
    s_lshr_b32 s8, s11, 2
    s_add_u32 s5, s5, s8
    s_lshl_b32 s7, s10, 2
    s_add_u32 s7, s7, s12
    v_lshrrev_b32 v1, 6, v0
    v_and_b32 v2, 63, v0
    v_readfirstlane_b32 s6, v1
    s_mul_i32 s13, s4, {RA}
    s_mul_i32 s14, s5, {RB}
    s_add_u32 s13, s13, s14
    s_mul_i32 s14, s13, 7282
    s_lshr_b32 s14, s14, 16
    s_mul_i32 s14, s14, 9
    s_sub_u32 s13, s13, s14
    s_lshl_b32 s64, s13, 7
    s_mul_i32 s66, s13, {64*3456}
    s_mov_b32 s68, s66
    s_lshl_b32 s69, s6, 12
    s_lshl_b32 s70, s6, 11
    s_add_u32 s70, s70, {WRING}
    s_lshl_b32 s71, s6, 10
    s_lshl_b32 s14, s4, 7
    s_lshl_b32 s15, s6, 5
    s_add_u32 s14, s14, s15
    v_lshrrev_b32 v18, 3, v2
    v_add_u32 v3, s14, v18
    v_mul_u32_u24 v3, 1152, v3
    v_lshrrev_b32 v19, 4, v2
    v_and_b32 v20, 7, v2
    v_xor_b32 v21, v20, v19
    v_lshl_add_u32 v4, v21, 4, v3
    v_mov_b32 v3, v4
    v_xor_b32 v4, 64, v4
    v_add_u32 v4, {8*1152}, v4
    s_mul_i32 s14, s5, 72
    s_andn2_b32 s14, s14, 63
    s_and_b32 s15, s6, 1
    s_lshl_b32 s74, s15, 3
    v_lshlrev_b32 v21, 1, v19
    v_or_b32 v21, s74, v21
    v_and_b32 v22, 15, v2
    v_xor_b32 v21, v21, v22
    v_lshrrev_b32 v23, 3, v21
    v_and_b32 v21, 7, v21
    v_lshlrev_b32 v21, 4, v21
    v_mul_u32_u24 v23, 1152, v23
    s_lshl_b32 s75, s6, 3
    v_add_u32 v24, s75, v19
    v_mul_u32_u24 v24, 3456, v24
    v_add3_u32 v5, v21, v23, v24
    s_add_u32 s76, s14, 1152
    v_add_u32 v5, s76, v5
    s_mul_i32 s76, s5, 1296
    v_lshl_add_u32 v25, v0, 2, s76
    s_waitcnt lgkmcnt(0)
    s_mov_b32 s44, s30
    s_mov_b32 s45, s31
    s_mov_b32 s46, {2048*1152}
    s_mov_b32 s47, 0x00020000
    s_mov_b32 s48, s32
    s_mov_b32 s49, s33
    s_mov_b32 s50, {576*3456}
    s_mov_b32 s51, 0x00020000
    s_mov_b32 s60, s34
    s_mov_b32 s61, s35
    s_mov_b32 s62, {32*648}
    s_mov_b32 s63, 0x00020000
    """)
    def dma_x(st):
        slot=st%2
        e("s_add_u32 s65, s64, 18432")
        for i in range(4):
            e(f"s_add_u32 m0, s69, {slot*16384+i*1024}")
            e(f"buffer_load_dwordx4 v{3+(i&1)}, s[44:47], s{64+(i>>1)} offen lds"); vq.add(f"X{st}")
        e("s_add_u32 s64, s64, 128\ns_cmp_eq_u32 s64, 1152\ns_cselect_b32 s64, 0, s64")
    def dma_w(t):
        pg=t%5
        e("s_add_u32 s67, s66, 13824")
        for i in range(2):
            e(f"s_add_u32 m0, s70, {pg*8192+i*1024}")
            e(f"buffer_load_dwordx4 v5, s[48:51], s{66+i} offen lds"); vq.add(f"W{t}")
        e(f"s_add_u32 s66, s66, {32*3456}\ns_cmp_eq_u32 s66, {576*3456}\ns_cselect_b32 s66, 0, s66")
    QP=[3,3,4,4,0,0,1,1,2,2]
    def qloc(t): return WRING+QP[t]*8192+(t&1)*4096 if t<10 else (t-10)*4096
    def dma_q(t):
        e(f"s_add_u32 m0, s71, {qloc(t)}")
        e(f"buffer_load_dwordx4 v7, s[48:51], s68 offen lds"); vq.add(f"Q{t}")
        e(f"s_add_u32 s68, s68, {32*3456}\ns_cmp_eq_u32 s68, {576*3456}\ns_cselect_b32 s68, 0, s68")
    if opts.get("stamps"): e("v_mov_b32 v31, 0")
    stamp()
    dma_x(0); dma_w(0)
    e("buffer_load_dword v26, v25, s[60:63], 0 offen"); vq.add("P0")
    e("buffer_load_dword v27, v25, s[60:63], 0 offen offset:1024"); vq.add("P1")
    dma_w(1); dma_x(1); dma_w(2); dma_w(3); dma_w(4)
    e(f"""
    s_mov_b32 s52, s42
    s_mov_b32 s53, s43
    s_mov_b32 s54, 0x1000000
    s_mov_b32 s55, 0x00020000
    s_mov_b32 s56, s38
    s_mov_b32 s57, s39
    s_mov_b32 s58, {2048*2304}
    s_mov_b32 s59, 0x00020000
    v_mov_b32 v30, 0
    s_memrealtime s[76:77]
    s_or_b32 s10, s2, s6
    s_cmp_eq_u32 s10, 0
    s_cselect_b64 s[78:79], 1, 0
    s_waitcnt lgkmcnt(0)
    s_or_b32 s76, s76, 1
    v_mov_b32 v28, s76
    s_mov_b64 exec, s[78:79]
    global_store_dword v30, v28, s[40:41] sc1
    s_mov_b64 exec, -1
    """); vq.add("NS")
    e(f"""
    s_mov_b32 s72, {LOG2E:#x}
    s_mov_b32 s73, {LOG2E:#x}
    v_and_b32 v21, 1, v19
    v_lshlrev_b32 v21, 1, v21
    s_lshl_b32 s74, s15, 2
    v_or_b32 v21, s74, v21
    v_xor_b32 v21, v21, v20
    v_add_u32 v24, s75, v18
    v_mul_u32_u24 v24, 3456, v24
    v_lshl_add_u32 v7, v21, 4, v24
    v_add_u32 v7, s14, v7
    v_lshrrev_b32 v21, 1, v22
    v_xor_b32 v21, v21, v19
    v_lshlrev_b32 v21, 4, v21
    v_lshl_add_u32 v8, v22, 7, v21
    v_add_u32 v8, s69, v8
    v_xor_b32 v9, 64, v8
    v_bfe_u32 v23, v2, 2, 2
    v_and_b32 v24, 3, v2
    s_and_b32 s74, s5, 7
    v_lshl_add_u32 v28, v19, 3, v23
    v_and_b32 v29, 1, v19
    v_lshl_or_b32 v21, v29, 2, v23
    v_lshlrev_b32 v21, 1, v21
    """)
    def traddr(dst, Preg, rho2, rowshift, base):
        e(f"""
        v_lshrrev_b32 v18, 1, v{Preg}
        v_xor_b32 v18, v18, v{rho2}
        v_lshlrev_b32 v18, 4, v18
        v_and_b32 v20, 1, v{Preg}
        v_lshl_add_u32 v18, v20, 3, v18
        v_lshl_add_u32 v{dst}, v28, {rowshift}, v18
        v_add_u32 v{dst}, {base}, v{dst}
        """)
    for T in range(5):
        if T<4:
            e(f"v_add_u32 v6, s74, v24\nv_add_u32 v6, {4*(T&1)+16*(T>>1)}, v6")
        else:
            e(f"v_and_b32 v6, 1, v24\nv_lshlrev_b32 v6, 4, v6\nv_add_u32 v6, s74, v6\nv_add_u32 v6, 8, v6")
        traddr(10+T, 6, 21, 8, WRING)
    e("v_lshrrev_b32 v21, 1, v23\nv_lshl_or_b32 v21, v29, 1, v21\nv_lshlrev_b32 v21, 1, v21")
    for T in range(3):
        if T<2: e(f"v_add_u32 v6, s74, v24\nv_add_u32 v6, {4*T}, v6")
        else: e(f"v_mov_b32 v6, s74\nv_add_u32 v6, 8, v6")
        traddr(15+T, 6, 21, 7, WRING)
    e(f"""
    v_mul_u32_u24 v18, 7282, v0
    v_lshrrev_b32 v18, 16, v18
    v_mul_u32_u24 v20, 44, v18
    v_lshl_add_u32 v20, v0, 2, v20
    v_add_u32 v21, 256, v0
    v_mul_u32_u24 v18, 7282, v21
    v_lshrrev_b32 v18, 16, v18
    v_mul_u32_u24 v6, 44, v18
    v_lshl_add_u32 v6, v21, 2, v6
    v_add_u32 v20, {WBD}, v20
    v_add_u32 v6, {WBD}, v6
    v_cmp_gt_u32 vcc, 68, v0
    v_mov_b32 v18, {DUMP}
    v_cndmask_b32 v6, v18, v6, vcc
    v_lshlrev_b32 v21, 2, v2
    v_min_u32 v21, 44, v21
    v_add_u32 v21, {WBDZ}, v21
    ds_write_b32 v21, v30
    """)
    for i in range(40): e(f"v_mov_b32 v{72+i}, 0")
    vq.wait("P1")
    e("""
    v_xor_b32 v28, 0x80008000, v26
    v_xor_b32 v29, 0x80008000, v27
    ds_write2_b32 v20, v26, v28 offset0:0 offset1:10
    ds_write2_b32 v6, v27, v29 offset0:0 offset1:10
    """)
    stamp()
    def mf1(t):
        for T in range(5):
            for n in range(2):
                e(f"v_mfma_f32_16x16x32_bf16 {q4(acc(T,n))}, {q4(wf(t%2,T))}, {q4(xf(t,n))}, {q4(acc(T,n))}")
    for t in range(18):
        tags=[f"W{t}"]+([f"X{t//2}"] if t%2==0 else [])
        vq.wait(*tags, extra=" lgkmcnt(0)")
        e("s_barrier")
        if t==1: stamp()
        pg=t%5
        for T in range(5):
            e(f"ds_read_b64_tr_b16 {pr(wf(t%2,T))}, v{10+T} offset:{pg*8192}")
            e(f"ds_read_b64_tr_b16 {pr(wf(t%2,T)+2)}, v{10+T} offset:{pg*8192+1024}")
        if t%2==0:
            for ee in range(2):
                for n in range(2):
                    e(f"ds_read_b128 {q4(xf(t+ee,n))}, v{8+ee} offset:{((t//2)%2)*16384+n*2048}")
        if t>=1:
            if t+4<18: dma_w(t+4)
            else: dma_q(2*(t-14)); dma_q(2*(t-14)+1)
        if t%2==1 and (t-1)//2+2<9: dma_x((t-1)//2+2)
        if t==12:
            e("global_load_dword v18, v30, s[40:41] sc1"); vq.add("NL")
        if t>=1: mf1(t-1)
    e("s_waitcnt lgkmcnt(0)")
    mf1(17)
    stamp()
    def sa_addr():
        e(f"""
        v_lshl_add_u32 v20, v19, 2, v23
        v_and_b32 v21, 1, v24
        v_mul_u32_u24 v21, 40, v21
        v_add_u32 v21, {WBD}, v21
        v_mov_b32 v6, {WBDZ}
        v_mul_u32_u24 v3, 80, v20
        v_add_u32 v3, v3, v21
        v_add_u32 v4, {16*80}, v3
        v_add_u32 v5, {32*80}, v3
        v_cmp_gt_u32 vcc, 2, v24
        v_cmp_gt_u32 s[76:77], 2, v20
        v_cmp_gt_u32 s[78:79], 4, v20
        v_cndmask_b32 v3, v6, v3, vcc
        s_xnor_b64 s[76:77], s[76:77], vcc
        s_andn2_b64 s[78:79], s[78:79], vcc
        v_cndmask_b32 v4, v6, v4, s[76:77]
        v_cndmask_b32 v5, v6, v5, s[78:79]
        """)
    def sa_read():
        for t in range(5):
            e(f"ds_read_b64_tr_b16 {pr(32+4*t)}, v3 offset:{8*t}")
            e(f"ds_read_b64_tr_b16 {pr(34+4*t)}, v4 offset:{8*t}")
            e(f"ds_read_b64_tr_b16 {pr(52+2*t)}, v5 offset:{8*t}")
    sa_addr(); sa_read()
    e(f"""
    s_lshl_b32 s10, s6, 5
    v_add_u32 v20, s10, v22
    v_mul_u32_u24 v8, 168, v20
    v_mul_u32_u24 v21, 40, v19
    v_add_u32 v8, v8, v21
    v_mul_u32_u24 v9, 88, v20
    v_add_u32 v9, {VV}, v9
    v_mul_u32_u24 v21, 40, v19
    v_min_u32 v21, 48, v21
    v_add3_u32 v10, v9, v21, 32
    v_lshl_add_u32 v9, v19, 3, v9
    v_cmp_eq_u32 vcc, 0, v19
    v_mov_b32 v6, 0x3f80
    """)
    for n in range(2):
        for (src,dst) in [(acc(0,n),acc(0,n)),(acc(1,n),acc(0,n)+2),(acc(4,n),acc(4,n)),(acc(2,n),acc(2,n)),(acc(3,n),acc(2,n)+2)]:
            e(f"v_cvt_pk_bf16_f32 v{dst}, v{src}, v{src+1}")
            e(f"v_cvt_pk_bf16_f32 v{dst+1}, v{src+2}, v{src+3}")
    Z=[[80,84,96,100,64],[68,20,24,12,106]]
    Z=[[80,84,96,100,64],[68,20,24,112-112+12,0]]
    Z[1][4]=72
    e("s_waitcnt lgkmcnt(0)")
    def stage2(KB4,KB2,Zt):
        for t in range(5):
            e(f"v_mfma_f32_16x16x32_bf16 {q4(Zt[t])}, {q4(32+4*t)}, {q4(KB4)}, 0")
        for t in range(5):
            e(f"v_mfma_f32_16x16x16_bf16 {q4(Zt[t])}, {pr(52+2*t)}, {pr(KB2)}, {q4(Zt[t])}")
    return_state=dict()
    Z[1]=[68,72,88,92,76]
    Z[1]=[68,72,88,92,26]
    stage2(acc(0,0),acc(4,0),Z[0])
    for n in range(2):
        b=acc(2,n)
        e(f"ds_write_b64 v9, {pr(b)} offset:{n*16*88}")
        e(f"v_cndmask_b32 v{106+4*n}, v{acc(4,n)}, v{b+2}, vcc")
        e(f"v_cndmask_b32 v{107+4*n}, v{acc(4,n)+1}, v6, vcc")
        e(f"v_cndmask_b32 v{b+2}, v{b+2}, v6, vcc")
        e(f"ds_write_b64 v10, {pr(106+4*n)} offset:{n*16*88}")
        e(f"ds_write_b64 v9, {pr(b+2)} offset:{n*16*88+40}")
    e("s_waitcnt lgkmcnt(0)")
    stage2(acc(0,1),acc(4,1),Z[1])
    for n in range(2):
        Zt=Z[n]
        outs=[Zt[i//2]+(i%2) for i in range(9)]
        softmax(e,Zt,outs,62,12)
        e(f"v_mov_b32 v{Zt[4]+1}, 0")
        for t in range(5):
            e(f"ds_write_b64 v8, {pr(Zt[t])} offset:{n*16*168+8*t}")
    stamp()
    e(f"""
    v_and_b32 v20, 1, v19
    v_lshlrev_b32 v20, 4, v20
    v_lshl_add_u32 v20, v23, 2, v20
    v_lshrrev_b32 v21, 1, v19
    v_lshl_add_u32 v20, v21, 1, v20
    v_mul_u32_u24 v8, 168, v20
    v_lshl_add_u32 v8, v24, 3, v8
    s_lshr_b32 s10, s6, 1
    s_add_u32 s11, s6, s10
    s_lshl_b32 s12, s11, 5
    v_add_u32 v9, 64, v8
    v_add_u32 v8, s12, v8
    v_mul_u32_u24 v10, 88, v20
    v_add_u32 v10, {VV}, v10
    v_and_b32 v21, 1, v24
    v_lshl_add_u32 v11, v21, 3, v10
    v_add_u32 v11, 32, v11
    v_lshl_add_u32 v10, v24, 3, v10
    s_mul_i32 s13, s10, 48
    v_add_u32 v10, s13, v10
    s_waitcnt lgkmcnt(0)
    s_barrier
    """)
    def kvbuf(ks,i): return 32+16*ks+4*i
    for ks in range(4):
        for i,(ar,st) in enumerate([(10,88),(11,88),(8,168),(9,168)]):
            for ee in range(2):
                e(f"ds_read_b64_tr_b16 {pr(kvbuf(ks,i)+2*ee)}, v{ar} offset:{ee*st+ks*32*st}")
        if ks==1:
            e(f"""
            s_lshl_b32 s13, s5, 4
            s_add_u32 s13, s13, s4
            s_mul_i32 s14, s13, 3200
            s_lshl_b32 s74, s6, 9
            s_add_u32 s74, s74, s14
            v_lshl_add_u32 v12, v2, 3, s74
            s_lshl_b32 s74, s11, 7
            s_add_u32 s74, s74, s14
            s_add_u32 s74, s74, 2560
            v_lshl_add_u32 v13, v22, 3, s74
            v_mov_b32 v6, {BIG:#x}
            v_cmp_eq_u32 vcc, s10, v19
            v_lshrrev_b32 v20, 3, v22
            v_cndmask_b32 v13, v6, v13, vcc
            v_and_b32 v21, 7, v22
            v_lshlrev_b32 v21, 3, v21
            v_lshl_add_u32 v21, v19, 6, v21
            s_lshl_b32 s74, s10, 8
            s_add_u32 s74, s74, s14
            s_add_u32 s74, s74, 2048
            v_add_u32 v14, s74, v21
            v_cmp_eq_u32 vcc, s10, v20
            s_bitcmp0_b32 s6, 0
            s_cselect_b64 s[76:77], vcc, 0
            v_cndmask_b32 v14, v6, v14, s[76:77]
            s_add_u32 s74, s14, {2560+256}
            v_lshl_add_u32 v25, v22, 3, s74
            v_cmp_eq_u32 vcc, v19, v20
            s_cmp_eq_u32 s6, 1
            s_cselect_b64 s[76:77], vcc, 0
            v_cndmask_b32 v25, v6, v25, s[76:77]
            """)
    D=[96,100,104,108]
    for ks in range(4):
        e(f"s_waitcnt lgkmcnt({min(15,8*(3-ks))})")
        for di,(ai,bi) in enumerate([(0,2),(1,2),(0,3),(1,3)]):
            c = "0" if ks==0 else q4(D[di])
            e(f"v_mfma_f32_16x16x32_bf16 {q4(D[di])}, {q4(kvbuf(ks,ai))}, {q4(kvbuf(ks,bi))}, {c}")
    for di,off in enumerate([12,13,14,25]):
        e(f"v_cvt_pk_bf16_f32 v{D[di]}, v{D[di]}, v{D[di]+1}\nv_cvt_pk_bf16_f32 v{D[di]+1}, v{D[di]+2}, v{D[di]+3}")
        e(f"buffer_store_dwordx2 {pr(D[di])}, v{off}, s[52:55], 0 offen sc1"); vq.add("PS")
    vq.wait("Q7","NL")
    e("s_barrier")
    for t in range(8,18): dma_q(t)
    e("s_movk_i32 s77, 20000\nv_readfirstlane_b32 s9, v18\ns_cmp_lg_u32 s9, 0\ns_cbranch_scc1 B_nonce_ok")
    a.label("B_nonce_poll")
    e("""
    s_sleep 1
    global_load_dword v18, v30, s[40:41] sc1
    s_waitcnt vmcnt(0)
    v_readfirstlane_b32 s9, v18
    s_sub_u32 s77, s77, 1
    s_cbranch_scc1 B_nonce_ok
    s_cmp_eq_u32 s9, 0
    s_cbranch_scc1 B_nonce_poll
    """)
    a.label("B_nonce_ok")
    e(f"""
    s_lshl_b32 s74, s13, 7
    s_lshl_b32 s75, s6, 2
    s_add_u32 s74, s74, s75
    s_add_u32 s74, s74, {WS_F1:#x}
    v_mov_b32 v20, s74
    v_mov_b32 v21, s9
    """)
    vq.wait("PS")
    e("s_mov_b64 exec, 1\nbuffer_store_dword v21, v20, s[52:55], 0 offen sc1\ns_mov_b64 exec, -1"); vq.add("F1")
    stamp()
    def qf(b,T): return 32+12*b+4*T
    def qacc(T,n): return 72+8*T+4*n
    def qreads(t):
        base = qloc(t)-WRING if t<10 else qloc(t)
        for T in range(3):
            e(f"ds_read_b64_tr_b16 {pr(qf(t%2,T))}, v{15+T} offset:{base}")
            e(f"ds_read_b64_tr_b16 {pr(qf(t%2,T)+2)}, v{15+T} offset:{base+512}")
    qreads(0)
    for t in range(18):
        if t+1<18:
            if t+1==8:
                vq.wait("Q17"); e("s_barrier")
            if t+1==10:
                for T in range(3): e(f"v_subrev_u32 v{15+T}, {WRING}, v{15+T}")
            qreads(t+1)
            e("s_waitcnt lgkmcnt(6)")
        else: e("s_waitcnt lgkmcnt(0)")
        for T in range(3):
            for n in range(2):
                c = "0" if t==0 else q4(qacc(T,n))
                e(f"v_mfma_f32_16x16x32_bf16 {q4(qacc(T,n))}, {q4(qf(t%2,T))}, {q4(xf(t,n))}, {c}")
    sa_read()
    for n in range(2):
        for (src,dst) in [(qacc(0,n),qacc(0,n)),(qacc(1,n),qacc(0,n)+2),(qacc(2,n),qacc(2,n))]:
            e(f"v_cvt_pk_bf16_f32 v{dst}, v{src}, v{src+1}")
            e(f"v_cvt_pk_bf16_f32 v{dst+1}, v{src+2}, v{src+3}")
    e("s_waitcnt lgkmcnt(0)")
    ZQ=[[112+4*t for t in range(5)],[132+4*t for t in range(5)]]
    PQ=[232,244]
    for n in range(2): stage2(qacc(0,n),qacc(2,n),ZQ[n])
    for n in range(2):
        softmax(e,ZQ[n],[PQ[n]+i for i in range(9)],62,12)
        e(f"v_mov_b32 v{PQ[n]+9}, 0")
    stamp()
    e(f"""
    s_mov_b32 s60, s36
    s_mov_b32 s61, s37
    s_mov_b32 s62, {576*1152}
    s_lshl_b32 s74, s5, 11
    s_add_u32 s74, s74, {WS_F1:#x}
    v_lshrrev_b32 v20, 2, v2
    v_lshlrev_b32 v20, 7, v20
    v_lshl_add_u32 v20, v24, 2, v20
    v_add_u32 v20, s74, v20
    s_mul_i32 s74, s5, {16*3200}
    v_lshl_add_u32 v8, v0, 4, s74
    v_mov_b32 v6, {BIG:#x}
    v_cmp_gt_u32 vcc, 200, v0
    v_cndmask_b32 v8, v6, v8, vcc
    s_cmp_lg_u32 s6, 0
    s_cbranch_scc1 B_h1_done
    """)
    e("s_movk_i32 s77, 20000")
    a.label("B_h1_poll")
    e("""
    buffer_load_dword v21, v20, s[52:55], 0 offen sc1
    s_waitcnt vmcnt(0)
    v_cmp_ne_u32 vcc, s9, v21
    s_cbranch_vccz B_h1_done
    s_sleep 1
    s_sub_u32 s77, s77, 1
    s_cbranch_scc0 B_h1_poll
    """)
    a.label("B_h1_done")
    e("s_barrier")
    stamp()
    vq.q=[]
    e("s_mov_b32 s74, 0")
    for p in range(16):
        e(f"buffer_load_dwordx4 {q4(112+4*p)}, v8, s[52:55], s74 offen sc1"); vq.add(f"L{p}")
        if p<15: e("s_add_u32 s74, s74, 3200")
    e(f"""
    v_lshrrev_b32 v20, 2, v2
    v_mul_u32_u24 v20, 36, v20
    v_add3_u32 v20, v20, v24, 32
    v_mul_u32_u24 v20, 1152, v20
    s_mul_i32 s75, s8, 144
    s_add_u32 s74, s75, 128
    v_add_u32 v20, s74, v20
    s_mov_b32 m0, s71
    buffer_load_dwordx4 v20, s[60:63], 0 offen lds
    """); vq.add("P9R")
    e(f"""
    v_lshrrev_b32 v20, 5, v0
    v_lshrrev_b32 v21, 6, v0
    v_add_u32 v20, v20, v21
    v_and_b32 v21, 7, v0
    v_lshlrev_b32 v21, 1, v21
    v_lshl_add_u32 v20, v20, 4, v21
    v_bfe_u32 v21, v0, 3, 2
    v_mul_u32_u24 v9, 56, v20
    v_lshl_add_u32 v9, v21, 3, v9
    v_bfe_u32 v20, v0, 4, 1
    v_lshlrev_b32 v20, 3, v20
    v_and_b32 v21, 3, v0
    v_lshl_add_u32 v20, v21, 1, v20
    v_add_u32 v20, 32, v20
    v_bfe_u32 v21, v0, 2, 2
    v_mul_u32_u24 v11, 56, v20
    v_lshl_add_u32 v11, v21, 3, v11
    v_cmp_gt_u32 vcc, 128, v0
    v_mov_b32 v6, {DUMP-KVBD}
    v_cndmask_b32 v9, v11, v9, vcc
    v_cmp_gt_u32 vcc, 160, v0
    v_subrev_u32 v20, 160, v0
    v_cndmask_b32 v9, v6, v9, vcc
    v_mul_u32_u24 v10, 112, v20
    v_add_u32 v10, 32, v10
    v_cmp_gt_u32 vcc, 40, v20
    v_add_u32 v9, {KVBD}, v9
    v_mov_b32 v6, {DUMP-KVBD+0}
    v_cndmask_b32 v10, v6, v10, vcc
    v_add_u32 v10, {KVBD}, v10
    v_cmp_gt_u32 s[76:77], 20, v20
    s_mov_b32 s74, 0x3f80
    s_mov_b32 s75, 0x3f800000
    """)
    e(f"""
    v_mul_u32_u24 v20, 20, v19
    v_add_u32 v20, v20, v23
    v_mul_u32_u24 v20, 56, v20
    v_add_u32 v20, {KVBD}, v20
    v_cmp_gt_u32 s[78:79], 2, v19
    """)
    for T in range(3):
        if T<2: e(f"v_lshl_add_u32 v21, v24, 1, {T}")
        else: e("v_mov_b32 v21, 8")
        e(f"""
        v_cmp_lt_u32 vcc, 4, v21
        v_subrev_u32 v25, 5, v21
        v_cndmask_b32 v26, v21, 6, vcc
        v_cndmask_b32 v27, 6, v25, vcc
        v_cmp_eq_u32 vcc, 4, v21
        v_cndmask_b32 v27, v27, 4, vcc
        v_cndmask_b32 v26, v27, v26, s[78:79]
        v_lshl_add_u32 v{11+T}, v26, 3, v20
        """)
    e("v_add_u32 v14, 40, v20")
    for p in range(16):
        vq.wait(f"L{p}")
        for d in range(4):
            src=112+4*p+d
            if p==0:
                e(f"v_lshlrev_b32 v{32+2*d}, 16, v{src}\nv_and_b32 v{33+2*d}, 0xffff0000, v{src}")
            else:
                e(f"v_dot2c_f32_bf16 v{32+2*d}, s74, v{src}\nv_dot2c_f32_bf16 v{33+2*d}, s75, v{src}")
    e("s_nop 2")
    for d in range(4): e(f"v_cvt_pk_bf16_f32 v{40+d}, v{32+2*d}, v{33+2*d}")
    e(f"""
    ds_write_b64 v9, v[40:41]
    ds_write_b64 v9, v[42:43] offset:56
    v_mov_b32 v52, 0
    v_mov_b32 v53, 0
    """)
    for k in range(2):
        a0,a1=40+2*k,41+2*k
        e(f"""
        v_cndmask_b32 v44, 0, v{a0}, s[76:77]
        v_cndmask_b32 v45, v{a1}, 0, s[76:77]
        v_cndmask_b32 v46, 0, v{a1}, s[76:77]
        v_cndmask_b32 v47, v{a0}, 0, s[76:77]
        ds_write_b64 v10, v[44:45] offset:{56*k}
        ds_write_b64 v10, v[46:47] offset:{56*k+8}
        ds_write_b64 v10, v[52:53] offset:{56*k+16}
        """)
    vq.wait("P9R", extra=" lgkmcnt(0)")
    e("s_barrier")
    def oa(T): return 112+12*T
    for T in range(4):
        for i in range(5):
            e(f"ds_read_b64_tr_b16 {pr(oa(T)+2*i)}, v{11+T} offset:{56*4*i}")
    e(f"""
    v_lshl_add_u32 v20, v19, 3, v23
    v_and_b32 v21, 1, v24
    v_lshlrev_b32 v21, 3, v21
    v_lshl_add_u32 v15, v20, 4, v21
    v_add_u32 v20, s71, v15
    """)
    T4R=224
    for kk in range(2):
        for ee in range(2):
            e(f"ds_read_b64_tr_b16 {pr(T4R+4*kk+2*ee)}, v20 offset:{512*kk+64*ee}")
    def od(T,n): return 32+16*n+4*T
    for T in (3,0,1,2):
        pass
    e("s_waitcnt lgkmcnt(0)")
    for n in range(2):
        for T in (3,0,1,2):
            e(f"v_mfma_f32_16x16x32_bf16 {q4(od(T,n))}, {q4(oa(T))}, {q4(PQ[n])}, 0")
        for T in (3,0,1,2):
            e(f"v_mfma_f32_16x16x32_bf16 {q4(od(T,n))}, {q4(oa(T)+4)}, {q4(PQ[n]+4)}, {q4(od(T,n))}")
        for T in (3,0,1,2):
            e(f"v_mfma_f32_16x16x16_bf16 {q4(od(T,n))}, {pr(oa(T)+8)}, {pr(PQ[n]+8)}, {q4(od(T,n))}")
    e(f"""
    s_lshl_b32 s74, s4, 3
    s_lshl_b32 s75, s6, 1
    s_add_u32 s74, s74, s75
    s_mul_i32 s74, s74, 18432
    s_add_u32 s74, s74, {WS_O:#x}
    s_lshl_b32 s75, s5, 10
    s_add_u32 s75, s75, s74
    v_lshl_add_u32 v8, v2, 4, s75
    s_lshl_b32 s75, s5, 7
    s_add_u32 s75, s75, s74
    s_add_u32 s75, s75, 16384
    v_lshl_add_u32 v9, v2, 3, s75
    v_mov_b32 v6, {BIG:#x}
    v_cmp_gt_u32 vcc, 16, v2
    v_cndmask_b32 v9, v6, v9, vcc
    v_cmp_gt_u32 s[76:77], 3, v19
    s_movk_i32 s75, 18432
    """)
    vq.q=[]
    for n in range(2):
        d3=od(3,n)
        e(f"""
        v_add_f32 v{d3}, 0x358637bd, v{d3}
        v_add_f32 v{d3+2}, 0x358637bd, v{d3+2}
        v_rcp_f32 v{d3}, v{d3}
        v_rcp_f32 v{d3+2}, v{d3+2}
        v_cndmask_b32 v64, v{d3+2}, v{d3}, s[76:77]
        v_cndmask_b32 v66, v{d3+2}, v{d3}, s[78:79]
        v_pk_mul_f32 {pr(od(0,n))}, {pr(od(0,n))}, v[64:65] op_sel_hi:[1,0]
        v_pk_mul_f32 {pr(od(0,n)+2)}, {pr(od(0,n)+2)}, v[66:67] op_sel_hi:[1,0]
        v_pk_mul_f32 {pr(od(1,n))}, {pr(od(1,n))}, v[66:67] op_sel_hi:[1,0]
        v_pk_mul_f32 {pr(od(1,n)+2)}, {pr(od(1,n)+2)}, v[66:67] op_sel_hi:[1,0]
        v_pk_mul_f32 {pr(od(2,n))}, {pr(od(2,n))}, {pr(d3+2)} op_sel_hi:[1,0]
        v_pk_mul_f32 {pr(od(2,n)+2)}, {pr(od(2,n)+2)}, {pr(d3+2)} op_sel_hi:[1,0]
        """)
        o=72+8*n
        for i in range(6):
            src=od(i//2,n)+2*(i%2)
            e(f"v_cvt_pk_bf16_f32 v{o+i}, v{src}, v{src+1}")
        so="0" if n==0 else "s75"
        e(f"buffer_store_dwordx4 {q4(o)}, v8, s[52:55], {so} offen sc1")
        e(f"buffer_store_dwordx2 {pr(o+4)}, v9, s[52:55], {so} offen sc1")
    e(f"""
    s_lshl_b32 s74, s4, 2
    s_add_u32 s74, s74, s6
    s_lshl_b32 s74, s74, 4
    s_add_u32 s74, s74, s5
    s_lshl_b32 s74, s74, 7
    s_add_u32 s74, s74, {WS_F2:#x}
    v_mov_b32 v20, s74
    v_mov_b32 v21, s9
    """)
    e(f"""
    v_lshrrev_b32 v25, 3, v2
    v_and_b32 v26, 1, v19
    v_lshlrev_b32 v26, 1, v26
    s_lshl_b32 s74, s15, 2
    v_or_b32 v26, s74, v26
    v_and_b32 v27, 7, v2
    v_xor_b32 v26, v26, v27
    s_mul_i32 s75, s8, 144
    v_lshl_add_u32 v26, v26, 4, s75
    s_lshl_b32 s74, s6, 3
    v_add_u32 v3, s74, v25
    v_mul_u32_u24 v3, 1152, v3
    v_add_u32 v3, v3, v26
    v_lshrrev_b32 v27, 2, v25
    s_lshl_b32 s74, s6, 1
    v_add_u32 v27, s74, v27
    v_mul_u32_u24 v27, 36, v27
    v_and_b32 v28, 3, v25
    v_add3_u32 v27, v27, v28, 32
    v_mul_u32_u24 v4, 1152, v27
    v_add_u32 v4, v4, v26
    v_lshrrev_b32 v27, 5, v2
    v_lshl_add_u32 v27, v27, 2, v2
    s_mul_i32 s74, s6, 144
    v_add_u32 v27, s74, v27
    v_mul_u32_u24 v5, 1152, v27
    s_add_u32 s74, s75, 128
    v_add_u32 v5, s74, v5
    s_waitcnt vmcnt(0)
    s_mov_b64 exec, 1
    buffer_store_dword v21, v20, s[52:55], 0 offen sc1
    s_mov_b64 exec, -1
    s_barrier
    """)
    stamp()
    e("s_mov_b32 s74, 0")
    for K in range(18):
        e(f"s_add_u32 m0, s71, {K*4096}")
        if K==16: e("s_mov_b32 s74, 0")
        e(f"buffer_load_dwordx4 v{3 if K<16 else 4}, s[60:63], s74 offen lds")
        e(f"s_add_u32 s74, s74, {36*1152 if K<16 else 8*36*1152}")
    e(f"s_lshl_b32 s75, s6, 11\ns_add_u32 m0, s75, {PG9}\ns_mov_b32 s74, {72*1152}")
    e("buffer_load_dwordx4 v5, s[60:63], 0 offen lds")
    e(f"s_add_u32 m0, s75, {PG9+1024}")
    e("buffer_load_dwordx4 v5, s[60:63], s74 offen lds")
    e(f"""
    v_lshl_add_u32 v28, v19, 3, v23
    v_and_b32 v29, 1, v19
    v_lshrrev_b32 v21, 1, v23
    v_lshl_or_b32 v21, v29, 1, v21
    v_lshlrev_b32 v21, 1, v21
    """)
    for T in range(4):
        e(f"v_add_u32 v6, {4*T}, v24")
        traddr(10+T, 6, 21, 7, 0)
    e(f"""
    v_add_u32 v15, {PG9}, v15
    s_lshl_b32 s74, s7, 2
    s_add_u32 s74, s74, s6
    s_lshr_b32 s75, s74, 1
    s_lshl_b32 s75, s75, 11
    s_add_u32 s75, s75, {WS_F2:#x}
    v_lshl_add_u32 v20, v22, 7, s75
    s_mul_i32 s75, s74, 18432
    s_add_u32 s75, s75, {WS_O:#x}
    v_lshl_add_u32 v8, v2, 4, s75
    v_lshlrev_b32 v9, 8, v19
    v_lshl_add_u32 v9, v22, 3, v9
    s_add_u32 s75, s75, 16384
    v_add_u32 v9, s75, v9
    s_lshl_b32 s74, s74, 4
    v_add_u32 v25, s74, v22
    v_mul_u32_u24 v25, 2304, v25
    s_mul_i32 s75, s8, 144
    s_add_u32 s75, s75, 1152
    v_add_u32 v25, s75, v25
    v_lshl_add_u32 v26, v19, 3, v25
    v_add_u32 v26, 128, v26
    v_mov_b32 v6, {BIG:#x}
    v_cndmask_b32 v26, v6, v26, s[78:79]
    v_lshl_add_u32 v25, v29, 5, v25
    v_lshrrev_b32 v27, 1, v19
    v_lshl_add_u32 v25, v27, 4, v25
    s_waitcnt vmcnt(0)
    s_barrier
    """)
    stamp()
    e("s_movk_i32 s77, 20000")
    a.label("B_h2_poll")
    e("""
    buffer_load_dword v21, v20, s[52:55], 0 offen sc1
    s_waitcnt vmcnt(0)
    v_cmp_ne_u32 vcc, s9, v21
    s_cbranch_vccz B_h2_done
    s_sleep 1
    s_sub_u32 s77, s77, 1
    s_cbranch_scc0 B_h2_poll
    """)
    a.label("B_h2_done")
    stamp()
    vq.q=[]
    def of(K): return 112+4*K
    e("s_movk_i32 s74, 4096\ns_movk_i32 s75, 8192\ns_movk_i32 s76, 12288")
    for K in range(16):
        so=["0","s74","s75","s76"][K//4]
        e(f"buffer_load_dwordx4 {q4(of(K))}, v8, s[52:55], {so} offen offset:{(K%4)*1024} sc1"); vq.add(f"O{K}")
    for kk in range(2):
        for h in range(2):
            e(f"buffer_load_dwordx2 {pr(of(16+kk)+2*h)}, v9, s[52:55], 0 offen offset:{kk*1024+h*128} sc1"); vq.add(f"O{16+kk}")
    def gf(b,T): return 32+20*b+4*T
    def greads(K):
        n=0
        for T in range(4):
            if K==16:
                e(f"v_add_u32 v{10+T}, 0x10000, v{10+T}")
            off=(K%16)*4096
            e(f"ds_read_b64_tr_b16 {pr(gf(K%2,T))}, v{10+T} offset:{off}")
            e(f"ds_read_b64_tr_b16 {pr(gf(K%2,T)+2)}, v{10+T} offset:{off+512}"); n+=2
        if K<16:
            e(f"ds_read_b64_tr_b16 {pr(gf(K%2,4))}, v15 offset:{K*512}")
            e(f"ds_read_b64_tr_b16 {pr(gf(K%2,4)+2)}, v15 offset:{K*512+64}"); n+=2
        return n
    GA=[72+4*T for T in range(5)]
    greads(0)
    for K in range(18):
        n = greads(K+1) if K+1<18 else 0
        vq.wait(f"O{K}", extra=f" lgkmcnt({n})")
        for T in range(5):
            A = gf(K%2,T) if (T<4 or K<16) else T4R+4*(K-16)
            c = "0" if K==0 else q4(GA[T])
            e(f"v_mfma_f32_16x16x32_bf16 {q4(GA[T])}, {q4(A)}, {q4(of(K))}, {c}")
    for T in range(5):
        e(f"v_cvt_pk_bf16_f32 v{96+2*T}, v{GA[T]}, v{GA[T]+1}\nv_cvt_pk_bf16_f32 v{97+2*T}, v{GA[T]+2}, v{GA[T]+3}")
    for p in range(2):
        e(f"v_permlane16_swap_b32 v{96+4*p}, v{98+4*p}\nv_permlane16_swap_b32 v{97+4*p}, v{99+4*p}")
        e(f"buffer_store_dwordx4 {q4(96+4*p)}, v25, s[56:59], 0 offen offset:{64*p}")
    e(f"buffer_store_dwordx2 v[104:105], v26, s[56:59], 0 offen")
    if opts.get("stamps"):
        e("s_waitcnt vmcnt(0)")
        stamp()
        e(f"""
        s_lshl_b32 s74, s2, 2
        s_add_u32 s74, s74, s6
        s_lshl_b32 s74, s74, 8
        s_add_u32 s74, s74, {WS_DBG:#x}
        v_lshl_add_u32 v20, v2, 2, s74
        buffer_store_dword v31, v20, s[52:55], 0 offen
        """)
```

```python
import sys
from asmlib import *
from gen_a import gen_a
NAME="concat_heads__ssm_conv_s4d__linear_kernel_hedgehog__prompt"
NB=256; NA=144
def main(out, with_b=True, opts={}):
    a=Asm()
    a.e(f"""
    s_load_dwordx16 s[16:31], s[0:1], 0
    s_load_dwordx8 s[32:39], s[0:1], 64
    s_load_dwordx4 s[40:43], s[0:1], 96
    s_cmp_ge_u32 s2, {NB+NA}
    s_cbranch_scc1 L_exit
    s_cmp_ge_u32 s2, {NB}
    s_cbranch_scc1 A_entry
    """)
    if with_b:
        from gen_b import gen_b
        gen_b(a, opts)
    a.label("L_exit")
    a.e("s_endpgm")
    gen_a(a, NB)
    a.pad()
    hdr = open("cdna_kernels/"+NAME+".s.ref").read().split("\n")
    head = [l for l in hdr if l.startswith(";") and "@launch" not in l and "Override" not in l and "grid=ceil" not in l]
    txt = "\n".join(head[:15]) + f"""
; generated by work/gen.py (hand-designed generator)
; @launch grid=({NB+NA},1,1) block=(256,1,1) lds=81920
.amdgcn_target "amdgcn-amd-amdhsa--gfx950"
.text
.globl {NAME}_kernel
.p2align 8
.type {NAME}_kernel,@function
{NAME}_kernel:
""" + a.text() + f"""
.section .rodata,"a"
.p2align 6
.amdhsa_kernel {NAME}_kernel
  .amdhsa_next_free_vgpr 256
  .amdhsa_next_free_sgpr 96
  .amdhsa_accum_offset 256
  .amdhsa_group_segment_fixed_size 0
  .amdhsa_kernarg_size 112
  .amdhsa_user_sgpr_count 2
  .amdhsa_user_sgpr_kernarg_segment_ptr 1
  .amdhsa_system_sgpr_workgroup_id_x 1
.end_amdhsa_kernel
"""
    open(out,"w").write(txt)
if __name__=="__main__":
    opts={}
    for x in sys.argv[2:]:
        if "=" in x:
            k,v=x.split("="); opts[k]=eval(v)
    main(sys.argv[1], with_b=("nob" not in sys.argv), opts=opts)
```

```python
WS_UT=0x500000; WS_YT=0xa00000; WS_FA1=0x440000; WS_FA2=0x450000
RS=17664; MOFF=4224; U1OFF=8448; U0OFF=13024
LOG2E=0x3fb8aa3b; NLOG2E=0xbfb8aa3b; INV2PI=0x3e22f983
XROWS = {0:[0],1:[1],2:[2],3:[3],4:[4],5:[5],6:[6],7:[7],256:[8],258:[9],260:[10,12],262:[13],264:[14],
         512:[16],516:[17],520:[18],768:[20],772:[21],776:[22],1024:[24],1032:[25],1280:[26],1288:[27],
         1536:[28],1544:[29],1792:[30],1800:[31]}
def pr(r): return f"v[{r}:{r+1}]"
def q4(r): return f"v[{r}:{r+3}]"

def gen_a(a, NB, opts={}):
    e=a.e
    sn=[0]
    def stamp():
        if not opts.get("stamps"): return
        i=sn[0]; sn[0]+=1
        e(f"{'s_memtime' if opts.get('cyc') else 's_memrealtime'} s[80:81]\ns_waitcnt lgkmcnt(0)\nv_writelane_b32 v79, s80, {i}")
    a.label("A_entry")
    def poll(name, vaddr, vt):
        e("s_movk_i32 s77, 20000")
        a.label(name+"_poll")
        e(f"""
        buffer_load_dword v{vt}, v{vaddr}, s[52:55], 0 offen sc1
        s_waitcnt vmcnt(0)
        v_cmp_ne_u32 vcc, s9, v{vt}
        s_cbranch_vccz {name}_done
        s_sleep 2
        s_sub_u32 s77, s77, 1
        s_cbranch_scc0 {name}_poll
        """)
        a.label(name+"_done")
    e(f"""
    s_mov_b32 s4, s2
    s_memrealtime s[76:77]
    s_and_b32 s3, s4, 15
    s_lshr_b32 s5, s4, 4
    v_lshrrev_b32 v1, 6, v0
    v_and_b32 v2, 63, v0
    v_readfirstlane_b32 s6, v1
    s_lshl_b32 s7, s4, 2
    s_add_u32 s7, s7, s6
    s_lshl_b32 s8, s7, 8
    v_lshl_add_u32 v3, v2, 2, s8
    s_lshl_b32 s11, s7, 1
    v_mov_b32 v28, s11
    s_mul_i32 s10, s6, {RS}
    s_lshl_b32 s11, s3, 7
    s_lshl_b32 s12, s6, 5
    s_add_u32 s11, s11, s12
    v_lshrrev_b32 v4, 3, v2
    v_add_u32 v4, s11, v4
    v_mul_u32_u24 v4, 1152, v4
    v_bfe_u32 v5, v2, 4, 1
    v_lshlrev_b32 v5, 1, v5
    v_and_b32 v6, 7, v2
    v_xor_b32 v5, v5, v6
    v_lshl_add_u32 v4, v5, 4, v4
    s_lshl_b32 s12, s5, 7
    v_add_u32 v4, s12, v4
    v_xor_b32 v5, 64, v4
    v_add_u32 v5, {8*1152}, v5
    s_lshl_b32 s56, s6, 12
    s_movk_i32 s57, 18432
    v_mov_b32 v78, 0
    s_waitcnt lgkmcnt(0)
    s_mov_b32 s44, s16
    s_mov_b32 s45, s17
    s_mov_b32 s46, {2048*1152}
    s_mov_b32 s47, 0x00020000
    s_cmp_lg_u32 s7, 0
    s_cbranch_scc1 A_nononce
    s_or_b32 s76, s76, 1
    v_mov_b32 v9, s76
    global_store_dword v78, v9, s[40:41] sc1
    """)
    a.label("A_nononce")
    for j in range(4):
        e(f"s_add_u32 m0, s56, {j*1024}")
        e(f"buffer_load_dwordx4 v{4+(j&1)}, s[44:47], {'0' if j<2 else 's57'} offen lds")
    e(f"""
    global_load_dword v22, v3, s[18:19]
    global_load_ushort v26, v28, s[26:27]
    global_load_dword v23, v3, s[20:21]
    global_load_dword v24, v3, s[22:23]
    global_load_dword v25, v3, s[24:25]
    global_load_ushort v27, v28, s[28:29]
    s_mov_b32 s48, s38
    s_mov_b32 s49, s39
    s_mov_b32 s50, {2048*2304}
    s_mov_b32 s51, 0x00020000
    s_mov_b32 s52, s42
    s_mov_b32 s53, s43
    s_mov_b32 s54, 0x1000000
    s_mov_b32 s55, 0x00020000
    v_lshrrev_b32 v74, 4, v2
    v_bfe_u32 v75, v2, 2, 2
    v_and_b32 v76, 3, v2
    v_and_b32 v77, 15, v2
    v_lshrrev_b32 v7, 1, v75
    v_and_b32 v8, 1, v74
    v_lshl_or_b32 v7, v8, 1, v7
    v_lshlrev_b32 v7, 1, v7
    v_lshrrev_b32 v8, 1, v76
    s_lshl_b32 s11, s6, 1
    v_add_u32 v8, s11, v8
    v_xor_b32 v7, v7, v8
    v_lshlrev_b32 v7, 4, v7
    v_and_b32 v8, 1, v76
    v_lshl_add_u32 v7, v8, 3, v7
    v_lshl_add_u32 v8, v74, 3, v75
    v_lshl_add_u32 v6, v8, 7, v7
    s_lshl_b32 s11, s5, 6
    s_lshl_b32 s12, s6, 4
    s_add_u32 s11, s11, s12
    s_lshl_b32 s11, s11, 12
    s_lshl_b32 s12, s3, 8
    s_add_u32 s11, s11, s12
    s_add_u32 s11, s11, {WS_UT:#x}
    v_lshlrev_b32 v7, 12, v77
    v_lshl_add_u32 v7, v74, 4, v7
    v_add_u32 v7, s11, v7
    s_waitcnt vmcnt(6)
    s_barrier
    global_load_dword v9, v78, s[40:41] sc1
    """)
    for i in range(4):
        e(f"ds_read_b64_tr_b16 {pr(96+4*i)}, v6 offset:{4096*i}")
        e(f"ds_read_b64_tr_b16 {pr(98+4*i)}, v6 offset:{4096*i+512}")
    for i in range(4):
        e(f"s_waitcnt lgkmcnt({6-2*i})")
        e(f"buffer_store_dwordx4 {q4(96+4*i)}, v7, s[52:55], 0 offen offset:{64*i} sc1")
    e("s_barrier")
    if opts.get("stamps"): e("v_mov_b32 v79, 0")
    stamp()
    e(f"""
    v_mul_u32_u24 v58, 264, v2
    v_add_u32 v58, s10, v58
    v_lshrrev_b32 v60, 5, v2
    v_lshl_add_u32 v60, v60, 2, v75
    v_mul_u32_u24 v59, {8*264}, v60
    v_and_b32 v61, 1, v74
    v_lshl_add_u32 v59, v61, 5, v59
    v_lshl_add_u32 v59, v76, 3, v59
    v_add_u32 v59, s10, v59
    """)
    for i in range(16): e(f"v_mov_b32 v{80+i}, 0")
    e(f"""
    s_waitcnt vmcnt(5)
    v_lshlrev_b32 v26, 16, v26
    v_mul_f32 v26, {LOG2E:#x}, v26
    v_exp_f32 v26, v26
    v_lshlrev_b32 v62, 16, v22
    v_and_b32 v63, 0xffff0000, v22
    v_cvt_pk_bf16_f32 v26, v26, v26
    v_mul_f32 v62, {LOG2E:#x}, v62
    v_mul_f32 v63, {LOG2E:#x}, v63
    v_exp_f32 v62, v62
    v_exp_f32 v63, v63
    v_lshlrev_b32 v28, 16, v26
    v_lshlrev_b32 v27, 16, v27
    v_cvt_pk_bf16_f32 v62, v62, v63
    v_add_f32 v29, v28, v28
    v_lshlrev_b32 v30, 16, v62
    v_and_b32 v34, 0xffff0000, v62
    v_mul_f32 v30, v30, v28
    v_mul_f32 v34, v34, v28
    v_mul_f32 v30, {NLOG2E:#x}, v30
    v_mul_f32 v34, {NLOG2E:#x}, v34
    v_lshlrev_b32 v31, 16, v23
    v_and_b32 v35, 0xffff0000, v23
    v_mul_f32 v31, v31, v28
    v_mul_f32 v35, v35, v28
    v_mul_f32 v31, {INV2PI:#x}, v31
    v_mul_f32 v35, {INV2PI:#x}, v35
    v_lshlrev_b32 v32, 16, v24
    v_and_b32 v36, 0xffff0000, v24
    v_lshlrev_b32 v33, 16, v25
    v_and_b32 v37, 0xffff0000, v25
    v_mul_f32 v32, v32, v29
    v_mul_f32 v36, v36, v29
    v_mul_f32 v33, v33, v29
    v_mul_f32 v37, v37, v29
    v_xor_b32 v33, 0x80000000, v33
    v_xor_b32 v37, 0x80000000, v37
    s_mov_b32 s13, 2
    v_mov_b32 v68, 1.0
    v_mov_b32 v69, 0
    """)
    stamp()
    a.label("A_pass")
    for (w,mul) in [(38,None),(41,0x41000000),(44,0x43800000)]:
        if mul is None:
            e(f"v_exp_f32 v48, v30\nv_fract_f32 v49, v31")
        else:
            e(f"v_mul_f32 v48, {mul:#x}, v30\nv_mul_f32 v49, {mul:#x}, v31\nv_exp_f32 v48, v48\nv_fract_f32 v49, v49")
        e(f"v_cos_f32 v{w}, v49\nv_sin_f32 v{w+1}, v49")
        e(f"v_mul_f32 v{w}, v{w}, v48\nv_mul_f32 v{w+1}, v{w+1}, v48\nv_xor_b32 v{w+2}, 0x80000000, v{w+1}")
    def cmul(d, z, w, conj):
        wi,nwi=(w+2,w+1) if conj else (w+1,w+2)
        e(f"v_mul_f32 v{d[0]}, v{z[0]}, v{w}\nv_mul_f32 v{d[1]}, v{z[1]}, v{w}")
        e(f"v_fmac_f32 v{d[0]}, v{z[1]}, v{nwi}\nv_fmac_f32 v{d[1]}, v{z[0]}, v{wi}")
    cv=[0]
    def put4(vals, off8):
        t=50+4*(cv[0]%2); cv[0]+=1
        for c in range(2):
            e(f"v_cvt_pk_bf16_f32 v{t+2*c}, v{vals[0][c]}, v{vals[1][c]}")
            e(f"v_cvt_pk_bf16_f32 v{t+2*c+1}, v{vals[2][c]}, v{vals[3][c]}")
        e(f"ds_write2_b64 v58, {pr(t)}, {pr(t+2)} offset0:{off8} offset1:{off8+8}")
    X={0:(32,33)}
    nx=[0]
    def nX(p, src, w):
        X[p]=(160+2*nx[0],161+2*nx[0]); nx[0]+=1
        cmul(X[p], X[src], w, True)
    for p in range(1,9):
        nX(p,p-1,38) if p<8 else nX(8,0,41)
        if p==3: put4([X[i] for i in (0,1,2,3)],0)
        if p==7: put4([X[i] for i in (4,5,6,7)],1)
    for p in (256,258,260,262,264): nX(p,p-256,44)
    put4([X[i] for i in (256,258,260,260)],2); put4([X[i] for i in (260,262,264,264)],3)
    for b,o in ((512,4),(768,5)):
        for d in (0,4,8): nX(b+d,b+d-256,44)
        put4([X[b],X[b+4],X[b+8],X[b+8]],o)
    for b,o in ((1024,6),(1536,7)):
        for p in (b,b+8,b+256,b+264): nX(p,p-256,44)
        put4([X[b],X[b+8],X[b+256],X[b+264]],o)
    Y={0:(68,69),1:(41,42)}
    for j in range(2,32):
        Y[j]=(224+2*(j%8),225+2*(j%8))
        cmul(Y[j],Y[j-1],41,False)
        if j%4==3: put4([Y[j-3],Y[j-2],Y[j-1],Y[j]],16+j//4)
    if opts.get("stamps"):
        e("s_cmp_eq_u32 s13, 1\ns_cbranch_scc1 A_skipst")
        stamp()
        e("s_waitcnt vmcnt(0)")
        stamp()
        a.label("A_skipst")
    e("s_waitcnt vmcnt(0)\ns_movk_i32 s77, 20000\nv_readfirstlane_b32 s9, v9\ns_cmp_lg_u32 s9, 0\ns_cbranch_scc1 A_nonce_ok")
    a.label("A_nonce_poll")
    e("""
    s_sleep 1
    global_load_dword v9, v78, s[40:41] sc1
    s_waitcnt vmcnt(0)
    v_readfirstlane_b32 s9, v9
    s_sub_u32 s77, s77, 1
    s_cbranch_scc1 A_nonce_ok
    s_cmp_eq_u32 s9, 0
    s_cbranch_scc1 A_nonce_poll
    """)
    a.label("A_nonce_ok")
    e(f"""
    s_lshl_b32 s11, s4, 7
    s_lshl_b32 s12, s6, 2
    s_add_u32 s58, s11, s12
    s_add_u32 s11, s58, {WS_FA1:#x}
    v_mov_b32 v10, s11
    v_mov_b32 v11, s9
    s_mov_b64 exec, 1
    buffer_store_dword v11, v10, s[52:55], 0 offen sc1
    s_mov_b64 exec, -1
    """)
    for st in range(8):
        for i in range(4):
            e(f"ds_read_b64_tr_b16 {pr(96+8*st+2*i)}, v59 offset:{264*st+64*i}")
        if st==2:
            e("v_mov_b32 v30, v34\nv_mov_b32 v31, v35\nv_mov_b32 v32, v36\nv_mov_b32 v33, v37")
        if st>=3:
            e(f"s_waitcnt lgkmcnt(12)")
            e(f"v_mfma_f32_32x32x16_bf16 v[80:95], {q4(96+8*(st-3))}, {q4(100+8*(st-3))}, v[80:95]")
    for st in range(5,8):
        e(f"s_waitcnt lgkmcnt({4*(7-st)})")
        e(f"v_mfma_f32_32x32x16_bf16 v[80:95], {q4(96+8*st)}, {q4(100+8*st)}, v[80:95]")
    e("""
    s_sub_u32 s13, s13, 1
    s_cmp_lg_u32 s13, 0
    s_cbranch_scc1 A_pass
    """)
    stamp()
    e(f"""
    s_lshl_b32 s11, s5, 11
    s_lshr_b32 s12, s3, 2
    s_lshl_b32 s12, s12, 2
    s_add_u32 s11, s11, s12
    s_add_u32 s11, s11, {WS_FA1:#x}
    v_lshl_add_u32 v10, v77, 7, s11
    s_lshl_b32 s59, s7, 12
    s_add_u32 s11, s59, {WS_UT:#x}
    v_lshl_add_u32 v12, v2, 4, s11
    v_subrev_u32 v13, 4, v12
    """)
    poll("A_h1", 10, 11)
    stamp()
    for j in range(4):
        e(f"buffer_load_dwordx4 {q4(112+8*j)}, v12, s[52:55], 0 offen offset:{1024*j} sc1")
        e(f"buffer_load_dword v{14+j}, v13, s[52:55], 0 offen offset:{1024*j} sc1")
    e(f"""
    v_and_b32 v60, 31, v2
    v_lshrrev_b32 v61, 5, v2
    v_lshlrev_b32 v62, 4, v60
    v_sub_u32 v62, s10, v62
    v_lshlrev_b32 v63, 3, v61
    v_sub_u32 v64, v62, v63
    v_add_u32 v64, 3576, v64
    v_lshlrev_b32 v63, 9, v61
    v_sub_u32 v65, v62, v63
    v_sub_u32 v66, v65, v63
    v_add_u32 v65, 3056, v65
    v_add_u32 v66, 1520, v66
    v_add_u32 v67, {MOFF+4}, v64
    v_add_u32 v68, {MOFF+4}, v65
    v_add_u32 v69, {MOFF+4}, v66
    v_cmp_eq_u32 vcc, 0, v2
    v_cndmask_b32 v27, 0, v27, vcc
    v_and_b32 v60, 1, v2
    v_cmp_eq_u32 vcc, 0, v60
    s_mov_b32 s14, 0x05040100
    s_mov_b32 s15, 0x07060302
    v_lshl_add_u32 v70, v2, 4, s10
    v_add_f32 v80, v80, v27
    v_cndmask_b32 v30, v93, v92, vcc
    v_cndmask_b32 v31, v95, v94, vcc
    v_cvt_pk_bf16_f32 v96, v83, v82
    v_cvt_pk_bf16_f32 v97, v81, v80
    v_cvt_pk_bf16_f32 v98, v86, v85
    v_cvt_pk_bf16_f32 v99, v84, v84
    v_cvt_pk_bf16_f32 v100, v90, v90
    v_cvt_pk_bf16_f32 v101, v89, v89
    v_cvt_pk_bf16_f32 v102, v89, v88
    v_cvt_pk_bf16_f32 v103, v88, v88
    v_cvt_pk_bf16_f32 v104, v93, v93
    v_cvt_pk_bf16_f32 v105, v93, v30
    v_cvt_pk_bf16_f32 v106, v92, v92
    v_cvt_pk_bf16_f32 v107, v92, v92
    v_cvt_pk_bf16_f32 v108, v95, v95
    v_cvt_pk_bf16_f32 v109, v95, v31
    v_cvt_pk_bf16_f32 v110, v94, v94
    v_cvt_pk_bf16_f32 v111, v94, v94
    ds_write_b64 v64, v[96:97] offset:512
    ds_write_b64 v64, v[98:99]
    ds_write_b128 v65, v[100:103]
    ds_write_b128 v66, v[104:107] offset:512
    ds_write_b128 v66, v[108:111]
    ds_write2_b32 v67, v96, v97 offset0:128 offset1:129
    ds_write2_b32 v67, v98, v99 offset0:0 offset1:1
    ds_write2_b32 v68, v100, v101 offset0:0 offset1:1
    ds_write2_b32 v68, v102, v103 offset0:2 offset1:3
    ds_write2_b32 v69, v104, v105 offset0:128 offset1:129
    ds_write2_b32 v69, v106, v107 offset0:130 offset1:131
    ds_write2_b32 v69, v108, v109 offset0:0 offset1:1
    ds_write2_b32 v69, v110, v111 offset0:2 offset1:3
    v_mov_b32 v32, 0
    v_mov_b32 v33, 0
    v_lshl_add_u32 v34, v2, 3, s10
    v_lshl_add_u32 v58, v2, 2, s10
    s_mov_b64 exec, 0xffff
    ds_write_b32 v58, v32 offset:4096
    ds_write_b32 v58, v32 offset:{MOFF+4100}
    s_mov_b32 exec_lo, -1
    s_mov_b32 exec_hi, 0x00ffffff
    ds_write_b64 v34, v[32:33] offset:{U1OFF}
    ds_write_b64 v34, v[32:33] offset:{U0OFF}
    s_mov_b64 exec, -1
    s_waitcnt vmcnt(0)
    """)
    stamp()
    e("s_mov_b64 exec, 1\nv_mov_b32 v14, 0\ns_mov_b64 exec, -1")
    for j in range(4):
        b=112+8*j
        e(f"v_alignbit_b32 v{b+4}, v{b}, v{14+j}, 16")
        for k in range(1,4): e(f"v_alignbit_b32 v{b+4+k}, v{b+k}, v{b+k-1}, 16")
        e(f"ds_write_b128 v70, {q4(b)} offset:{U1OFF+448+1024*j}")
        e(f"ds_write_b128 v70, {q4(b+4)} offset:{U0OFF+448+1024*j}")
    e(f"""
    v_and_b32 v60, 15, v2
    v_lshrrev_b32 v61, 4, v2
    v_lshlrev_b32 v61, 4, v61
    v_add_u32 v61, s10, v61
    v_lshrrev_b32 v62, 1, v60
    v_lshl_add_u32 v72, v62, 6, v61
    v_mov_b32 v63, {U1OFF+448}
    v_mov_b32 v64, {U0OFF+448}
    v_cndmask_b32 v63, v63, v64, vcc
    v_add_u32 v72, v72, v63
    v_lshlrev_b32 v62, 2, v60
    v_sub_u32 v73, v61, v62
    v_mov_b32 v63, {4092-3584}
    v_mov_b32 v64, {MOFF+4096-3584}
    v_cndmask_b32 v63, v63, v64, vcc
    v_add_u32 v73, v73, v63
    """)
    for i in range(32): e(f"v_mov_b32 v{224+i}, 0")
    def reads(S):
        L=[]
        for i in range(8):
            L.append(f"ds_read_b128 {q4(S+4*i)}, v72 offset:{512*i}")
            L.append(f"ds_read_b64 {pr(S+32+4*i)}, v73 offset:{3584-512*i}")
            L.append(f"ds_read_b64 {pr(S+34+4*i)}, v73 offset:{3584-512*i+8}")
        return L
    L=reads(96)
    for i,x in enumerate(L):
        e(x)
        if i==11: e("s_waitcnt lgkmcnt(4)")
    stamp()
    e("s_mov_b32 s13, 4")
    a.label("A_conv")
    for (S,Sn) in [(96,160),(160,96)]:
        e("v_subrev_u32 v72, 64, v72\nv_subrev_u32 v73, 64, v73\ns_waitcnt lgkmcnt(0)")
        L=reads(Sn)
        pairs=[(ee,q) for q in range(8) for ee in range(8-q)]
        for i,(ee,q) in enumerate(pairs):
            J=ee+q
            e(f"v_mfma_f32_16x16x32_bf16 {q4(224+4*J)}, {q4(S+4*ee)}, {q4(S+32+4*q)}, {q4(224+4*J)}")
            if i<24: e(L[i])
    e("""
    s_sub_u32 s13, s13, 1
    s_cmp_lg_u32 s13, 0
    s_cbranch_scc1 A_conv
    """)
    stamp()
    e(f"""
    v_lshlrev_b32 v61, 7, v74
    v_lshl_add_u32 v61, v77, 2, v61
    v_add_u32 v61, s10, v61
    s_add_u32 s11, s59, {WS_YT:#x}
    v_lshl_add_u32 v12, v2, 4, s11
    s_waitcnt lgkmcnt(0)
    """)
    for J in range(8):
        e(f"v_cvt_pk_bf16_f32 v{96+2*J}, v{224+4*J}, v{225+4*J}")
        e(f"v_cvt_pk_bf16_f32 v{97+2*J}, v{226+4*J}, v{227+4*J}")
        e(f"ds_write_b32 v61, v{96+2*J} offset:{512*J}")
        e(f"ds_write_b32 v61, v{97+2*J} offset:{512*J+64}")
    for j in range(4): e(f"ds_read_b128 {q4(112+4*j)}, v70 offset:{1024*j}")
    for j in range(4):
        e(f"s_waitcnt lgkmcnt({3-j})")
        e(f"buffer_store_dwordx4 {q4(112+4*j)}, v12, s[52:55], 0 offen offset:{1024*j} sc1")
    e(f"""
    s_add_u32 s11, s58, {WS_FA2:#x}
    v_mov_b32 v10, s11
    v_mov_b32 v11, s9
    s_lshl_b32 s11, s5, 11
    s_lshl_b32 s12, s6, 9
    s_add_u32 s11, s11, s12
    s_add_u32 s11, s11, {WS_FA2:#x}
    v_lshl_add_u32 v13, v75, 7, s11
    v_lshl_add_u32 v13, v76, 2, v13
    s_lshl_b32 s11, s5, 6
    s_lshl_b32 s12, s6, 4
    s_add_u32 s11, s11, s12
    s_lshl_b32 s11, s11, 12
    s_lshl_b32 s12, s3, 8
    s_add_u32 s11, s11, s12
    s_add_u32 s11, s11, {WS_YT:#x}
    v_lshlrev_b32 v14, 12, v74
    v_lshl_add_u32 v14, v77, 4, v14
    v_add_u32 v14, s11, v14
    v_mul_u32_u24 v15, 272, v74
    v_lshl_add_u32 v15, v77, 4, v15
    v_add_u32 v15, s10, v15
    v_lshrrev_b32 v16, 1, v74
    v_mul_u32_u24 v16, {RS}, v16
    v_and_b32 v17, 1, v74
    v_lshl_add_u32 v17, v17, 3, v75
    v_mul_u32_u24 v17, 272, v17
    v_add_u32 v16, v16, v17
    v_lshl_add_u32 v16, v76, 3, v16
    s_lshl_b32 s11, s6, 6
    v_add_u32 v16, s11, v16
    s_lshl_b32 s11, s3, 7
    s_lshl_b32 s12, s6, 5
    s_add_u32 s11, s11, s12
    v_add_u32 v17, s11, v77
    v_mul_u32_u24 v17, 2304, v17
    v_lshl_add_u32 v17, v74, 4, v17
    s_lshl_b32 s11, s5, 7
    v_add_u32 v17, s11, v17
    s_movk_i32 s60, 16384
    s_mov_b32 s61, 32768
    s_mov_b32 s62, 49152
    s_mov_b32 s63, {16*2304}
    s_waitcnt vmcnt(0)
    s_mov_b64 exec, 1
    buffer_store_dword v11, v10, s[52:55], 0 offen sc1
    s_mov_b64 exec, -1
    """)
    stamp()
    poll("A_h2", 13, 11)
    stamp()
    for j in range(4):
        e(f"buffer_load_dwordx4 {q4(112+4*j)}, v14, s[52:55], {['0','s60','s61','s62'][j]} offen sc1")
    for j in range(4):
        e(f"s_waitcnt vmcnt({3-j})")
        e(f"ds_write_b128 v15, {q4(112+4*j)} offset:{4*272*j}")
    e("s_waitcnt lgkmcnt(0)\ns_barrier")
    for n in range(2):
        for h in range(2):
            for ee in range(2):
                e(f"ds_read_b64_tr_b16 {pr(128+8*n+4*h+2*ee)}, v16 offset:{2*RS*h+4*272*ee+32*n}")
    for n in range(2):
        for h in range(2):
            e(f"s_waitcnt lgkmcnt({6-4*n-2*h})")
            e(f"buffer_store_dwordx4 {q4(128+8*n+4*h)}, v17, s[48:51], {'0' if n==0 else 's63'} offen offset:{64*h}")
    if opts.get("stamps"):
        stamp()
        e("s_waitcnt vmcnt(0)")
        stamp()
        e(f"""
        v_writelane_b32 v79, s82, 20
        s_memtime s[86:87]
        s_waitcnt lgkmcnt(0)
        s_sub_u32 s86, s86, s84
        v_writelane_b32 v79, s86, 21
        s_getreg_b32 s86, hwreg(HW_REG_HW_ID)
        s_getreg_b32 s87, hwreg(HW_REG_XCC_ID)
        v_writelane_b32 v79, s86, 22
        v_writelane_b32 v79, s87, 23
        s_lshl_b32 s74, s2, 2
        s_add_u32 s74, s74, s6
        s_lshl_b32 s74, s74, 8
        s_add_u32 s74, s74, 0x800000
        v_lshl_add_u32 v20, v2, 2, s74
        global_store_dword v20, v79, s[42:43]
        """)
    e("s_endpgm")
```

```python
LOG2E=0x3fb8aa3b; NLOG2E=0xbfb8aa3b
WRING=32768; PG9=73728
WBD=73728; WBDZ=WBD+36*80
KVBD=WBD+2944
DUMP=KVBD+4480
P9R=DUMP+72+8
PH=0; VV=21504
WS_PART=0; WS_O=0x100000; WS_F1=0x400000; WS_F2=0x410000; WS_DBG=0x800000
BIG=0x7f000000
def pr(r): return f"v[{r}:{r+1}]"
def q4(r): return f"v[{r}:{r+3}]"
def xf(t,n): return 112+8*t+4*n
def acc(T,n): return 72+8*T+4*n
def wf(b,T): return 32+20*b+4*T

class VQ:
    def __init__(s,a): s.q=[]; s.a=a
    def add(s,tag): s.q.append(tag)
    def n_after(s,tags):
        idx=max(i for i,t in enumerate(s.q) if t in tags)
        return len(s.q)-1-idx
    def wait(s,*tags,extra=""):
        n=s.n_after(tags); assert n<=63
        s.a.e(f"s_waitcnt vmcnt({n}){extra}")

def softmax(e, Z, outs, tm, ts):
    z=[Z[i//4]+i%4 for i in range(18)]
    e(f"v_max3_f32 v{tm}, v{z[0]}, v{z[1]}, v{z[2]}")
    for i in range(3,17,2): e(f"v_max3_f32 v{tm}, v{tm}, v{z[i]}, v{z[i+1]}")
    e(f"v_max_f32 v{tm}, v{tm}, v{z[17]}")
    for i in range(18): e(f"v_sub_f32 v{z[i]}, v{z[i]}, v{tm}")
    for i in range(18): e(f"v_mul_f32 v{z[i]}, s72, v{z[i]}")
    for i in range(18): e(f"v_exp_f32 v{z[i]}, v{z[i]}")
    e(f"v_add_f32 v{ts}, v{z[0]}, v{z[1]}")
    for i in range(2,18): e(f"v_add_f32 v{ts}, v{ts}, v{z[i]}")
    e(f"v_rcp_f32 v{ts}, v{ts}")
    for i in range(18): e(f"v_mul_f32 v{z[i]}, v{z[i]}, v{ts}")
    for i in range(9):
        e(f"v_cvt_pk_bf16_f32 v{outs[i]}, v{z[2*i]}, v{z[2*i+1]}")

def softmax_fma(e, Z, outs, tm, ts):
    z=[Z[i//4]+i%4 for i in range(18)]
    e(f"v_max3_f32 v{tm}, v{z[0]}, v{z[1]}, v{z[2]}")
    for i in range(3,17,2): e(f"v_max3_f32 v{tm}, v{tm}, v{z[i]}, v{z[i+1]}")
    e(f"v_max_f32 v{tm}, v{tm}, v{z[17]}")
    e(f"v_mul_f32 v{tm}, s72, v{tm}")
    for i in range(18): e(f"v_fma_f32 v{z[i]}, v{z[i]}, s72, -v{tm}")
    for i in range(18): e(f"v_exp_f32 v{z[i]}, v{z[i]}")
    e(f"v_add_f32 v{ts}, v{z[0]}, v{z[1]}")
    for i in range(2,18): e(f"v_add_f32 v{ts}, v{ts}, v{z[i]}")
    e(f"v_rcp_f32 v{ts}, v{ts}")
    for i in range(18): e(f"v_mul_f32 v{z[i]}, v{z[i]}, v{ts}")
    for i in range(9):
        e(f"v_cvt_pk_bf16_f32 v{outs[i]}, v{z[2*i]}, v{z[2*i+1]}")
softmax=softmax_fma

def gen_b(a, opts):
    e=a.e
    vq=VQ(a)
    stamp_n=[0]
    def stamp():
        if not opts.get("stamps"): return
        i=stamp_n[0]; stamp_n[0]+=1
        e(f"{'s_memtime' if opts.get('cyc') else 's_memrealtime'} s[80:81]\ns_waitcnt lgkmcnt(0)\nv_writelane_b32 v31, s80, {i}")
    RA,RB=opts.get("rot",(2,1))
    if opts.get("prio",1): e("s_setprio 3")
    e(f"""
    s_sub_u32 s3, s2, {opts["NA"]}
    s_and_b32 s10, s3, 7
    s_lshr_b32 s11, s3, 3
    s_lshr_b32 s4, s10, 1
    s_lshl_b32 s4, s4, 2
    s_and_b32 s12, s11, 3
    s_add_u32 s4, s4, s12
    s_and_b32 s5, s10, 1
    s_lshl_b32 s5, s5, 3
    s_lshr_b32 s8, s11, 2
    s_add_u32 s5, s5, s8
    s_lshl_b32 s7, s10, 2
    s_add_u32 s7, s7, s12
    v_lshrrev_b32 v1, 6, v0
    v_and_b32 v2, 63, v0
    v_readfirstlane_b32 s6, v1
    s_mul_i32 s13, s4, {RA}
    s_mul_i32 s14, s5, {RB}
    s_add_u32 s13, s13, s14
    s_mul_i32 s14, s13, 7282
    s_lshr_b32 s14, s14, 16
    s_mul_i32 s14, s14, 9
    s_sub_u32 s13, s13, s14
    s_lshl_b32 s64, s13, 7
    s_mul_i32 s66, s13, {64*3456}
    s_mov_b32 s68, s66
    s_lshl_b32 s69, s6, 12
    s_lshl_b32 s70, s6, 11
    s_add_u32 s70, s70, {WRING}
    s_lshl_b32 s71, s6, 10
    s_lshl_b32 s14, s4, 7
    s_lshl_b32 s15, s6, 5
    s_add_u32 s14, s14, s15
    v_lshrrev_b32 v18, 3, v2
    v_add_u32 v3, s14, v18
    v_mul_u32_u24 v3, 1152, v3
    v_lshrrev_b32 v19, 4, v2
    v_and_b32 v20, 7, v2
    v_xor_b32 v21, v20, v19
    v_lshl_add_u32 v4, v21, 4, v3
    v_mov_b32 v3, v4
    v_xor_b32 v4, 64, v4
    v_add_u32 v4, {8*1152}, v4
    s_mul_i32 s14, s5, 72
    s_andn2_b32 s14, s14, 63
    s_and_b32 s15, s6, 1
    s_lshl_b32 s74, s15, 3
    v_lshlrev_b32 v21, 1, v19
    v_or_b32 v21, s74, v21
    v_and_b32 v22, 15, v2
    v_xor_b32 v21, v21, v22
    v_lshrrev_b32 v23, 3, v21
    v_and_b32 v21, 7, v21
    v_lshlrev_b32 v21, 4, v21
    v_mul_u32_u24 v23, 1152, v23
    s_lshl_b32 s75, s6, 3
    v_add_u32 v24, s75, v19
    v_mul_u32_u24 v24, 3456, v24
    v_add3_u32 v5, v21, v23, v24
    s_add_u32 s76, s14, 1152
    v_add_u32 v5, s76, v5
    s_mul_i32 s76, s5, 1296
    v_lshl_add_u32 v25, v0, 2, s76
    s_waitcnt lgkmcnt(0)
    s_mov_b32 s44, s30
    s_mov_b32 s45, s31
    s_mov_b32 s46, {2048*1152}
    s_mov_b32 s47, 0x00020000
    s_mov_b32 s48, s32
    s_mov_b32 s49, s33
    s_mov_b32 s50, {576*3456}
    s_mov_b32 s51, 0x00020000
    s_mov_b32 s60, s34
    s_mov_b32 s61, s35
    s_mov_b32 s62, {32*648}
    s_mov_b32 s63, 0x00020000
    """)
    def dma_x(st):
        slot=st%2
        e("s_add_u32 s65, s64, 18432")
        for i in range(4):
            e(f"s_add_u32 m0, s69, {slot*16384+i*1024}")
            e(f"buffer_load_dwordx4 v{3+(i&1)}, s[44:47], s{64+(i>>1)} offen lds"); vq.add(f"X{st}")
        e("s_add_u32 s64, s64, 128\ns_cmp_eq_u32 s64, 1152\ns_cselect_b32 s64, 0, s64")
    def dma_w(t):
        pg=t%5
        e("s_add_u32 s67, s66, 13824")
        for i in range(2):
            e(f"s_add_u32 m0, s70, {pg*8192+i*1024}")
            e(f"buffer_load_dwordx4 v5, s[48:51], s{66+i} offen lds"); vq.add(f"W{t}")
        e(f"s_add_u32 s66, s66, {32*3456}\ns_cmp_eq_u32 s66, {576*3456}\ns_cselect_b32 s66, 0, s66")
    QP=[3,3,4,4,0,0,1,1,2,2]
    def qloc(t): return WRING+QP[t]*8192+(t&1)*4096 if t<10 else (t-10)*4096
    def dma_q(t):
        e(f"s_add_u32 m0, s71, {qloc(t)}")
        e(f"buffer_load_dwordx4 v7, s[48:51], s68 offen lds"); vq.add(f"Q{t}")
        e(f"s_add_u32 s68, s68, {32*3456}\ns_cmp_eq_u32 s68, {576*3456}\ns_cselect_b32 s68, 0, s68")
    if opts.get("stamps"): e("v_mov_b32 v31, 0")
    stamp()
    dma_x(0); dma_w(0)
    e("buffer_load_dword v26, v25, s[60:63], 0 offen"); vq.add("P0")
    e("buffer_load_dword v27, v25, s[60:63], 0 offen offset:1024"); vq.add("P1")
    dma_w(1); dma_x(1); dma_w(2); dma_w(3); dma_w(4)
    e(f"""
    s_mov_b32 s52, s42
    s_mov_b32 s53, s43
    s_mov_b32 s54, 0x1000000
    s_mov_b32 s55, 0x00020000
    s_mov_b32 s56, s38
    s_mov_b32 s57, s39
    s_mov_b32 s58, {2048*2304}
    s_mov_b32 s59, 0x00020000
    v_mov_b32 v30, 0
    """)
    e(f"""
    s_mov_b32 s72, {LOG2E:#x}
    s_mov_b32 s73, {LOG2E:#x}
    v_and_b32 v21, 1, v19
    v_lshlrev_b32 v21, 1, v21
    s_lshl_b32 s74, s15, 2
    v_or_b32 v21, s74, v21
    v_xor_b32 v21, v21, v20
    v_add_u32 v24, s75, v18
    v_mul_u32_u24 v24, 3456, v24
    v_lshl_add_u32 v7, v21, 4, v24
    v_add_u32 v7, s14, v7
    v_lshrrev_b32 v21, 1, v22
    v_xor_b32 v21, v21, v19
    v_lshlrev_b32 v21, 4, v21
    v_lshl_add_u32 v8, v22, 7, v21
    v_add_u32 v8, s69, v8
    v_xor_b32 v9, 64, v8
    v_bfe_u32 v23, v2, 2, 2
    v_and_b32 v24, 3, v2
    s_and_b32 s74, s5, 7
    v_lshl_add_u32 v28, v19, 3, v23
    v_and_b32 v29, 1, v19
    v_lshl_or_b32 v21, v29, 2, v23
    v_lshlrev_b32 v21, 1, v21
    """)
    def traddr(dst, Preg, rho2, rowshift, base):
        e(f"""
        v_lshrrev_b32 v18, 1, v{Preg}
        v_xor_b32 v18, v18, v{rho2}
        v_lshlrev_b32 v18, 4, v18
        v_and_b32 v20, 1, v{Preg}
        v_lshl_add_u32 v18, v20, 3, v18
        v_lshl_add_u32 v{dst}, v28, {rowshift}, v18
        v_add_u32 v{dst}, {base}, v{dst}
        """)
    for T in range(5):
        if T<4:
            e(f"v_add_u32 v6, s74, v24\nv_add_u32 v6, {4*(T&1)+16*(T>>1)}, v6")
        else:
            e(f"v_and_b32 v6, 1, v24\nv_lshlrev_b32 v6, 4, v6\nv_add_u32 v6, s74, v6\nv_add_u32 v6, 8, v6")
        traddr(10+T, 6, 21, 8, WRING)
    e("v_lshrrev_b32 v21, 1, v23\nv_lshl_or_b32 v21, v29, 1, v21\nv_lshlrev_b32 v21, 1, v21")
    for T in range(3):
        if T<2: e(f"v_add_u32 v6, s74, v24\nv_add_u32 v6, {4*T}, v6")
        else: e(f"v_mov_b32 v6, s74\nv_add_u32 v6, 8, v6")
        traddr(15+T, 6, 21, 7, WRING)
    e(f"""
    v_mul_u32_u24 v18, 7282, v0
    v_lshrrev_b32 v18, 16, v18
    v_mul_u32_u24 v20, 44, v18
    v_lshl_add_u32 v20, v0, 2, v20
    v_add_u32 v21, 256, v0
    v_mul_u32_u24 v18, 7282, v21
    v_lshrrev_b32 v18, 16, v18
    v_mul_u32_u24 v6, 44, v18
    v_lshl_add_u32 v6, v21, 2, v6
    v_add_u32 v20, {WBD}, v20
    v_add_u32 v6, {WBD}, v6
    v_cmp_gt_u32 vcc, 68, v0
    v_mov_b32 v18, {DUMP}
    v_cndmask_b32 v6, v18, v6, vcc
    v_lshlrev_b32 v21, 2, v2
    v_min_u32 v21, 44, v21
    v_add_u32 v21, {WBDZ}, v21
    ds_write_b32 v21, v30
    """)
    for i in range(40): e(f"v_mov_b32 v{72+i}, 0")
    vq.wait("P1")
    e("""
    v_xor_b32 v28, 0x80008000, v26
    v_xor_b32 v29, 0x80008000, v27
    ds_write2_b32 v20, v26, v28 offset0:0 offset1:10
    ds_write2_b32 v6, v27, v29 offset0:0 offset1:10
    """)
    stamp()
    def mf1(t, fill=()):
        fill=list(fill)
        for T in range(5):
            for n in range(2):
                e(f"v_mfma_f32_16x16x32_bf16 {q4(acc(T,n))}, {q4(wf(t%2,T))}, {q4(xf(t,n))}, {q4(acc(T,n))}")
            if fill: fill.pop(0)()
        for f in fill: f()
    for t in range(18):
        tags=[f"W{t}"]+([f"X{t//2}"] if t%2==0 else [])
        vq.wait(*tags, extra=" lgkmcnt(0)")
        e("s_barrier")
        if t==1: stamp()
        pg=t%5
        for T in range(5):
            e(f"ds_read_b64_tr_b16 {pr(wf(t%2,T))}, v{10+T} offset:{pg*8192}")
            e(f"ds_read_b64_tr_b16 {pr(wf(t%2,T)+2)}, v{10+T} offset:{pg*8192+1024}")
        if t%2==0:
            for ee in range(2):
                for n in range(2):
                    e(f"ds_read_b128 {q4(xf(t+ee,n))}, v{8+ee} offset:{((t//2)%2)*16384+n*2048}")
        fill=[]
        if t>=1:
            if t+4<18: fill.append(lambda t=t: dma_w(t+4))
            else:
                fill.append(lambda t=t: dma_q(2*(t-14))); fill.append(lambda t=t: dma_q(2*(t-14)+1))
        if t%2==1 and (t-1)//2+2<9: fill.append(lambda t=t: dma_x((t-1)//2+2))
        if t==12:
            def nl():
                e("global_load_dword v18, v30, s[40:41] sc1"); vq.add("NL")
            fill.append(nl)
        if t>=1: mf1(t-1, fill)
    e("s_waitcnt lgkmcnt(0)")
    mf1(17)
    stamp()
    def sa_addr():
        e(f"""
        v_lshl_add_u32 v20, v19, 2, v23
        v_and_b32 v21, 1, v24
        v_mul_u32_u24 v21, 40, v21
        v_add_u32 v21, {WBD}, v21
        v_mov_b32 v6, {WBDZ}
        v_mul_u32_u24 v3, 80, v20
        v_add_u32 v3, v3, v21
        v_add_u32 v4, {16*80}, v3
        v_add_u32 v5, {32*80}, v3
        v_cmp_gt_u32 vcc, 2, v24
        v_cmp_gt_u32 s[76:77], 2, v20
        v_cmp_gt_u32 s[78:79], 4, v20
        v_cndmask_b32 v3, v6, v3, vcc
        s_xnor_b64 s[76:77], s[76:77], vcc
        s_andn2_b64 s[78:79], s[78:79], vcc
        v_cndmask_b32 v4, v6, v4, s[76:77]
        v_cndmask_b32 v5, v6, v5, s[78:79]
        """)
    def sa_read():
        for t in range(5):
            e(f"ds_read_b64_tr_b16 {pr(32+4*t)}, v3 offset:{8*t}")
            e(f"ds_read_b64_tr_b16 {pr(34+4*t)}, v4 offset:{8*t}")
            e(f"ds_read_b64_tr_b16 {pr(52+2*t)}, v5 offset:{8*t}")
    sa_addr(); sa_read()
    e(f"""
    s_lshl_b32 s10, s6, 5
    v_add_u32 v20, s10, v22
    v_mul_u32_u24 v8, 168, v20
    v_mul_u32_u24 v21, 40, v19
    v_add_u32 v8, v8, v21
    v_mul_u32_u24 v9, 88, v20
    v_add_u32 v9, {VV}, v9
    v_mul_u32_u24 v21, 40, v19
    v_min_u32 v21, 48, v21
    v_add3_u32 v10, v9, v21, 32
    v_lshl_add_u32 v9, v19, 3, v9
    v_cmp_eq_u32 vcc, 0, v19
    v_mov_b32 v6, 0x3f80
    """)
    for n in range(2):
        for (src,dst) in [(acc(0,n),acc(0,n)),(acc(1,n),acc(0,n)+2),(acc(4,n),acc(4,n)),(acc(2,n),acc(2,n)),(acc(3,n),acc(2,n)+2)]:
            e(f"v_cvt_pk_bf16_f32 v{dst}, v{src}, v{src+1}")
            e(f"v_cvt_pk_bf16_f32 v{dst+1}, v{src+2}, v{src+3}")
    Z=[[80,84,96,100,64],[68,20,24,12,106]]
    Z=[[80,84,96,100,64],[68,20,24,112-112+12,0]]
    Z[1][4]=72
    e("s_waitcnt lgkmcnt(0)")
    def stage2(KB4,KB2,Zt):
        for t in range(5):
            e(f"v_mfma_f32_16x16x32_bf16 {q4(Zt[t])}, {q4(32+4*t)}, {q4(KB4)}, 0")
        for t in range(5):
            e(f"v_mfma_f32_16x16x16_bf16 {q4(Zt[t])}, {pr(52+2*t)}, {pr(KB2)}, {q4(Zt[t])}")
    return_state=dict()
    Z[1]=[68,72,88,92,76]
    Z[1]=[68,72,88,92,26]
    stage2(acc(0,0),acc(4,0),Z[0])
    for n in range(2):
        b=acc(2,n)
        e(f"ds_write_b64 v9, {pr(b)} offset:{n*16*88}")
        e(f"v_cndmask_b32 v{106+4*n}, v{acc(4,n)}, v{b+2}, vcc")
        e(f"v_cndmask_b32 v{107+4*n}, v{acc(4,n)+1}, v6, vcc")
        e(f"v_cndmask_b32 v{b+2}, v{b+2}, v6, vcc")
        e(f"ds_write_b64 v10, {pr(106+4*n)} offset:{n*16*88}")
        e(f"ds_write_b64 v9, {pr(b+2)} offset:{n*16*88+40}")
    e("s_waitcnt lgkmcnt(0)")
    stage2(acc(0,1),acc(4,1),Z[1])
    for n in range(2):
        Zt=Z[n]
        outs=[Zt[i//2]+(i%2) for i in range(9)]
        softmax(e,Zt,outs,62,12)
        e(f"v_mov_b32 v{Zt[4]+1}, 0")
        for t in range(5):
            e(f"ds_write_b64 v8, {pr(Zt[t])} offset:{n*16*168+8*t}")
    stamp()
    e(f"""
    v_and_b32 v20, 1, v19
    v_lshlrev_b32 v20, 4, v20
    v_lshl_add_u32 v20, v23, 2, v20
    v_lshrrev_b32 v21, 1, v19
    v_lshl_add_u32 v20, v21, 1, v20
    v_mul_u32_u24 v8, 168, v20
    v_lshl_add_u32 v8, v24, 3, v8
    s_lshr_b32 s10, s6, 1
    s_add_u32 s11, s6, s10
    s_lshl_b32 s12, s11, 5
    v_add_u32 v9, 64, v8
    v_add_u32 v8, s12, v8
    v_mul_u32_u24 v10, 88, v20
    v_add_u32 v10, {VV}, v10
    v_and_b32 v21, 1, v24
    v_lshl_add_u32 v11, v21, 3, v10
    v_add_u32 v11, 32, v11
    v_lshl_add_u32 v10, v24, 3, v10
    s_mul_i32 s13, s10, 48
    v_add_u32 v10, s13, v10
    s_waitcnt lgkmcnt(0)
    s_barrier
    """)
    def kvbuf(ks,i): return 32+16*ks+4*i
    for ks in range(4):
        for i,(ar,st) in enumerate([(10,88),(11,88),(8,168),(9,168)]):
            for ee in range(2):
                e(f"ds_read_b64_tr_b16 {pr(kvbuf(ks,i)+2*ee)}, v{ar} offset:{ee*st+ks*32*st}")
        if ks==1:
            e(f"""
            s_lshl_b32 s13, s5, 4
            s_add_u32 s13, s13, s4
            s_mul_i32 s14, s13, 3200
            s_lshl_b32 s74, s6, 9
            s_add_u32 s74, s74, s14
            v_lshl_add_u32 v12, v2, 3, s74
            s_lshl_b32 s74, s11, 7
            s_add_u32 s74, s74, s14
            s_add_u32 s74, s74, 2560
            v_lshl_add_u32 v13, v22, 3, s74
            v_mov_b32 v6, {BIG:#x}
            v_cmp_eq_u32 vcc, s10, v19
            v_lshrrev_b32 v20, 3, v22
            v_cndmask_b32 v13, v6, v13, vcc
            v_and_b32 v21, 7, v22
            v_lshlrev_b32 v21, 3, v21
            v_lshl_add_u32 v21, v19, 6, v21
            s_lshl_b32 s74, s10, 8
            s_add_u32 s74, s74, s14
            s_add_u32 s74, s74, 2048
            v_add_u32 v14, s74, v21
            v_cmp_eq_u32 vcc, s10, v20
            s_bitcmp0_b32 s6, 0
            s_cselect_b64 s[76:77], vcc, 0
            v_cndmask_b32 v14, v6, v14, s[76:77]
            s_add_u32 s74, s14, {2560+256}
            v_lshl_add_u32 v25, v22, 3, s74
            v_cmp_eq_u32 vcc, v19, v20
            s_cmp_eq_u32 s6, 1
            s_cselect_b64 s[76:77], vcc, 0
            v_cndmask_b32 v25, v6, v25, s[76:77]
            """)
    D=[96,100,104,108]
    for ks in range(4):
        e(f"s_waitcnt lgkmcnt({min(15,8*(3-ks))})")
        for di,(ai,bi) in enumerate([(0,2),(1,2),(0,3),(1,3)]):
            c = "0" if ks==0 else q4(D[di])
            e(f"v_mfma_f32_16x16x32_bf16 {q4(D[di])}, {q4(kvbuf(ks,ai))}, {q4(kvbuf(ks,bi))}, {c}")
    for di,off in enumerate([12,13,14,25]):
        e(f"v_cvt_pk_bf16_f32 v{D[di]}, v{D[di]}, v{D[di]+1}\nv_cvt_pk_bf16_f32 v{D[di]+1}, v{D[di]+2}, v{D[di]+3}")
        e(f"buffer_store_dwordx2 {pr(D[di])}, v{off}, s[52:55], 0 offen sc1"); vq.add("PS")
    vq.wait("Q7","NL")
    e("s_barrier")
    for t in range(8,18): dma_q(t)
    e("s_movk_i32 s77, 20000\nv_readfirstlane_b32 s9, v18\ns_cmp_lg_u32 s9, 0\ns_cbranch_scc1 B_nonce_ok")
    a.label("B_nonce_poll")
    e("""
    s_sleep 1
    global_load_dword v18, v30, s[40:41] sc1
    s_waitcnt vmcnt(0)
    v_readfirstlane_b32 s9, v18
    s_sub_u32 s77, s77, 1
    s_cbranch_scc1 B_nonce_ok
    s_cmp_eq_u32 s9, 0
    s_cbranch_scc1 B_nonce_poll
    """)
    a.label("B_nonce_ok")
    e(f"""
    s_lshl_b32 s74, s13, 7
    s_lshl_b32 s75, s6, 2
    s_add_u32 s74, s74, s75
    s_add_u32 s74, s74, {WS_F1:#x}
    v_mov_b32 v20, s74
    v_mov_b32 v21, s9
    """)
    vq.wait("PS")
    e("s_mov_b64 exec, 1\nbuffer_store_dword v21, v20, s[52:55], 0 offen sc1\ns_mov_b64 exec, -1"); vq.add("F1")
    stamp()
    def qf(b,T): return 32+12*b+4*T
    def qacc(T,n): return 72+8*T+4*n
    def qreads(t):
        base = qloc(t)-WRING if t<10 else qloc(t)
        for T in range(3):
            e(f"ds_read_b64_tr_b16 {pr(qf(t%2,T))}, v{15+T} offset:{base}")
            e(f"ds_read_b64_tr_b16 {pr(qf(t%2,T)+2)}, v{15+T} offset:{base+512}")
    e(f"""
    s_lshl_b32 s74, s5, 11
    s_add_u32 s74, s74, {WS_F1:#x}
    v_lshrrev_b32 v20, 2, v2
    v_lshlrev_b32 v20, 7, v20
    v_lshl_add_u32 v20, v24, 2, v20
    v_add_u32 v20, s74, v20
    s_mul_i32 s74, s5, {16*3200}
    s_lshl_b32 s75, s6, 9
    s_add_u32 s74, s74, s75
    v_and_b32 v8, 31, v2
    v_lshl_add_u32 v8, v8, 4, s74
    v_lshrrev_b32 v21, 5, v2
    v_mul_u32_u24 v21, 3200, v21
    v_add_u32 v8, v8, v21
    v_and_b32 v21, 31, v2
    v_lshl_add_u32 v21, v21, 4, s75
    v_cmp_gt_u32 vcc, {3200-2048}, v21
    v_mov_b32 v6, {BIG:#x}
    v_cndmask_b32 v9, v6, v8, vcc
    """)
    qreads(0)
    for t in range(18):
        if t+1<18:
            if t+1==8:
                vq.wait("Q17"); e("s_barrier")
            if t+1==10:
                for T in range(3): e(f"v_subrev_u32 v{15+T}, {WRING}, v{15+T}")
            if t+1==14:
                e("buffer_load_dword v21, v20, s[52:55], 0 offen sc1")
            qreads(t+1)
            e("s_waitcnt lgkmcnt(6)")
        else: e("s_waitcnt lgkmcnt(0)")
        for T in range(3):
            for n in range(2):
                c = "0" if t==0 else q4(qacc(T,n))
                e(f"v_mfma_f32_16x16x32_bf16 {q4(qacc(T,n))}, {q4(qf(t%2,T))}, {q4(xf(t,n))}, {c}")
    sa_read()
    PL=160
    def ploads():
        e("s_mov_b32 s74, 0")
        for p in range(8):
            e(f"buffer_load_dwordx4 {q4(PL+8*p)}, v8, s[52:55], s74 offen sc1")
            e(f"buffer_load_dwordx4 {q4(PL+8*p+4)}, v9, s[52:55], s74 offen offset:2048 sc1")
            if p<7: e("s_add_u32 s74, s74, 6400")
    e("""
    s_waitcnt vmcnt(0)
    v_cmp_ne_u32 vcc, s9, v21
    s_mov_b32 s10, 0
    s_cbranch_vccnz B_early_skip
    s_mov_b32 s10, 1
    """)
    ploads()
    a.label("B_early_skip")
    for n in range(2):
        for (src,dst) in [(qacc(0,n),qacc(0,n)),(qacc(1,n),qacc(0,n)+2),(qacc(2,n),qacc(2,n))]:
            e(f"v_cvt_pk_bf16_f32 v{dst}, v{src}, v{src+1}")
            e(f"v_cvt_pk_bf16_f32 v{dst+1}, v{src+2}, v{src+3}")
    e("s_waitcnt lgkmcnt(0)")
    ZQ=[[112+4*t for t in range(5)],[132+4*t for t in range(5)]]
    PQ=[232,244]
    for n in range(2): stage2(qacc(0,n),qacc(2,n),ZQ[n])
    e(f"""
    v_lshrrev_b32 v25, 3, v22
    v_and_b32 v26, 1, v19
    v_cmp_eq_u32 vcc, v25, v26
    v_and_b32 v25, 1, v22
    v_lshlrev_b32 v25, 4, v25
    v_mov_b32 v26, 0x3f80
    v_lshlrev_b32 v26, v25, v26
    v_cndmask_b32 v26, 0, v26, vcc
    v_bfe_u32 v25, v22, 1, 2
    """)
    for d in range(4):
        e(f"v_cmp_eq_u32 vcc, {d}, v25\nv_cndmask_b32 v{64+d}, 0, v26, vcc")
    for n in range(2):
        softmax(e,ZQ[n],[PQ[n]+i for i in range(9)],62,12)
        e(f"v_mov_b32 v{PQ[n]+9}, 0")
    stamp()
    e("s_cmp_eq_u32 s10, 1\ns_cbranch_scc1 B_h1_have\ns_movk_i32 s77, 20000")
    a.label("B_h1_poll")
    e("""
    buffer_load_dword v21, v20, s[52:55], 0 offen sc1
    s_waitcnt vmcnt(0)
    v_cmp_ne_u32 vcc, s9, v21
    s_cbranch_vccz B_h1_done
    s_sleep 1
    s_sub_u32 s77, s77, 1
    s_cbranch_scc0 B_h1_poll
    """)
    a.label("B_h1_done")
    ploads()
    a.label("B_h1_have")
    stamp()
    e(f"""
    v_lshrrev_b32 v25, 1, v19
    v_lshlrev_b32 v25, 5, v25
    v_lshl_add_u32 v25, v22, 1, v25
    v_and_b32 v26, 1, v19
    v_add_u32 v25, v25, v26
    v_and_b32 v26, 15, v25
    s_lshl_b32 s74, s11, 4
    v_add_u32 v26, s74, v26
    v_mul_u32_u24 v10, 56, v26
    v_lshrrev_b32 v26, 4, v25
    v_lshl_add_u32 v10, v26, 3, v10
    v_add_u32 v10, {KVBD}, v10
    v_lshrrev_b32 v26, 5, v25
    v_and_b32 v27, 7, v25
    v_lshl_add_u32 v26, v26, 3, v27
    v_mul_u32_u24 v11, 56, v26
    v_bfe_u32 v26, v25, 3, 2
    v_lshl_add_u32 v11, v26, 3, v11
    v_add_u32 v11, {KVBD+32*56}, v11
    v_mov_b32 v6, {DUMP}
    s_cmp_eq_u32 s6, 0
    s_cselect_b64 vcc, -1, 0
    v_cndmask_b32 v11, v6, v11, vcc
    s_sub_u32 s74, s6, 1
    s_lshl_b32 s74, s74, 6
    v_add_u32 v25, s74, v25
    v_mul_u32_u24 v14, 56, v25
    v_add_u32 v14, {KVBD+32}, v14
    v_cmp_gt_u32 vcc, 80, v25
    v_cmp_gt_u32 s[76:77], 40, v25
    v_cndmask_b32 v14, v6, v14, vcc
    """)
    OAD=[3,4,5,7]
    e(f"""
    v_mul_u32_u24 v20, 20, v19
    v_add_u32 v20, v20, v23
    v_mul_u32_u24 v20, 56, v20
    v_add_u32 v20, {KVBD}, v20
    v_cmp_gt_u32 s[78:79], 2, v19
    """)
    for T in range(3):
        if T<2: e(f"v_lshl_add_u32 v21, v24, 1, {T}")
        else: e("v_mov_b32 v21, 8")
        e(f"""
        v_cmp_lt_u32 vcc, 4, v21
        v_subrev_u32 v25, 5, v21
        v_cndmask_b32 v26, v21, 6, vcc
        v_cndmask_b32 v27, 6, v25, vcc
        v_cmp_eq_u32 vcc, 4, v21
        v_cndmask_b32 v27, v27, 4, vcc
        v_cndmask_b32 v26, v27, v26, s[78:79]
        v_lshl_add_u32 v{OAD[T]}, v26, 3, v20
        """)
    e("v_add_u32 v7, 40, v20\nv_mov_b32 v52, 0\nv_mov_b32 v53, 0")
    for p in range(8):
        for c in range(2):
            e(f"s_waitcnt vmcnt({15-2*p-c})")
            cc = "0" if p==0 else q4(32+4*c)
            e(f"v_mfma_f32_16x16x32_bf16 {q4(32+4*c)}, v[64:67], {q4(PL+8*p+4*c)}, {cc}")
    e(f"""
    v_cvt_pk_bf16_f32 v40, v32, v33
    v_cvt_pk_bf16_f32 v41, v34, v35
    ds_write_b64 v10, v[40:41]
    v_cvt_pk_bf16_f32 v42, v36, v37
    v_cvt_pk_bf16_f32 v43, v38, v39
    ds_write_b64 v11, v[42:43]
    v_cndmask_b32 v44, 0, v42, s[76:77]
    v_cndmask_b32 v45, v43, 0, s[76:77]
    v_cndmask_b32 v46, 0, v43, s[76:77]
    v_cndmask_b32 v47, v42, 0, s[76:77]
    ds_write2_b64 v14, v[44:45], v[46:47] offset0:0 offset1:1
    ds_write_b64 v14, v[52:53] offset:16
    s_waitcnt lgkmcnt(0)
    s_barrier
    """)
    def oa(T): return 112+12*T
    order=(3,0,1,2)
    for i in range(5):
        for T in order:
            e(f"ds_read_b64_tr_b16 {pr(oa(T)+2*i)}, v{OAD[T]} offset:{56*4*i}")
    def od(T,n): return 32+16*n+4*T
    e(f"""
    s_lshl_b32 s74, s4, 3
    s_lshl_b32 s75, s6, 1
    s_add_u32 s74, s74, s75
    s_mul_i32 s74, s74, 18432
    s_add_u32 s74, s74, {WS_O:#x}
    s_lshl_b32 s75, s5, 10
    s_add_u32 s75, s75, s74
    v_lshl_add_u32 v8, v2, 4, s75
    s_lshl_b32 s75, s5, 7
    s_add_u32 s75, s75, s74
    s_add_u32 s75, s75, 16384
    v_lshl_add_u32 v9, v2, 3, s75
    v_mov_b32 v6, {BIG:#x}
    v_cmp_gt_u32 vcc, 16, v2
    v_cmp_gt_u32 s[76:77], 3, v19
    v_cndmask_b32 v9, v6, v9, vcc
    s_movk_i32 s75, 18432
    """)
    e("s_waitcnt lgkmcnt(12)")
    for n in range(2):
        for T in order:
            e(f"v_mfma_f32_16x16x32_bf16 {q4(od(T,n))}, {q4(oa(T))}, {q4(PQ[n])}, 0")
    e("s_waitcnt lgkmcnt(4)")
    for n in range(2):
        for T in order:
            e(f"v_mfma_f32_16x16x32_bf16 {q4(od(T,n))}, {q4(oa(T)+4)}, {q4(PQ[n]+4)}, {q4(od(T,n))}")
    e("s_waitcnt lgkmcnt(0)")
    for n in range(2):
        for T in order:
            e(f"v_mfma_f32_16x16x16_bf16 {q4(od(T,n))}, {pr(oa(T)+8)}, {pr(PQ[n]+8)}, {q4(od(T,n))}")
    for n in range(2):
        d3=od(3,n)
        e(f"""
        v_add_f32 v{d3}, 0x358637bd, v{d3}
        v_add_f32 v{d3+2}, 0x358637bd, v{d3+2}
        v_rcp_f32 v{d3}, v{d3}
        v_rcp_f32 v{d3+2}, v{d3+2}
        v_cndmask_b32 v64, v{d3+2}, v{d3}, s[76:77]
        v_cndmask_b32 v66, v{d3+2}, v{d3}, s[78:79]
        """)
        for i in range(12):
            sc = 64 if i<2 else (66 if i<8 else d3+2)
            e(f"v_mul_f32 v{od(0,n)+i}, v{od(0,n)+i}, v{sc}")
        o=72+8*n
        for i in range(6):
            src=od(0,n)+2*i
            e(f"v_cvt_pk_bf16_f32 v{o+i}, v{src}, v{src+1}")
        so="0" if n==0 else "s75"
        e(f"buffer_store_dwordx4 {q4(o)}, v8, s[52:55], {so} offen sc1")
        e(f"buffer_store_dwordx2 {pr(o+4)}, v9, s[52:55], {so} offen sc1")
    e(f"""
    s_lshl_b32 s74, s4, 2
    s_add_u32 s74, s74, s6
    s_lshl_b32 s74, s74, 4
    s_add_u32 s74, s74, s5
    s_lshl_b32 s74, s74, 7
    s_add_u32 s74, s74, {WS_F2:#x}
    v_mov_b32 v16, s74
    v_mov_b32 v17, s9
    s_mov_b32 s10, 1
    """)
    a.label("P5_entry")
    e(f"""
    s_mov_b32 s60, s36
    s_mov_b32 s61, s37
    s_mov_b32 s62, {576*1152}
    s_mov_b32 s63, 0x00020000
    v_lshrrev_b32 v25, 3, v2
    v_and_b32 v29, 1, v19
    v_lshlrev_b32 v26, 1, v29
    s_lshl_b32 s74, s15, 2
    v_or_b32 v26, s74, v26
    v_and_b32 v27, 7, v2
    v_xor_b32 v26, v26, v27
    s_lshl_b32 s75, s8, 7
    v_lshl_add_u32 v26, v26, 4, s75
    s_lshl_b32 s74, s6, 3
    v_add_u32 v3, s74, v25
    v_mul_u32_u24 v3, 1152, v3
    v_add_u32 v3, v3, v26
    v_lshrrev_b32 v27, 2, v25
    s_lshl_b32 s74, s6, 1
    v_add_u32 v27, s74, v27
    v_mul_u32_u24 v27, 36, v27
    v_and_b32 v28, 3, v25
    v_add3_u32 v27, v27, v28, 32
    v_mul_u32_u24 v4, 1152, v27
    v_add_u32 v4, v4, v26
    s_mov_b32 s74, 0
    """)
    for K in range(18):
        e(f"s_add_u32 m0, s71, {K*4096}")
        if K==16: e("s_mov_b32 s74, 0")
        e(f"buffer_load_dwordx4 v{3 if K<16 else 4}, s[60:63], s74 offen lds")
        e(f"s_add_u32 s74, s74, {36*1152 if K<16 else 8*36*1152}")
        if K==opts.get("flagK",5):
            e(f"""
            s_cmp_eq_u32 s10, 0
            s_cbranch_scc1 P5_noflag
            s_waitcnt vmcnt({K+1})
            s_mov_b64 exec, 1
            buffer_store_dword v17, v16, s[52:55], 0 offen sc1
            s_mov_b64 exec, -1
            """)
            a.label("P5_noflag")
            stamp()
    e(f"""
    v_lshl_add_u32 v28, v19, 3, v23
    v_lshrrev_b32 v21, 1, v23
    v_lshl_or_b32 v21, v29, 1, v21
    v_lshlrev_b32 v21, 1, v21
    """)
    for T in range(4):
        e(f"v_add_u32 v6, {4*T}, v24")
        traddr(10+T, 6, 21, 7, 0)
    e(f"""
    s_lshl_b32 s74, s7, 2
    s_add_u32 s74, s74, s6
    s_lshr_b32 s75, s74, 1
    s_lshl_b32 s75, s75, 11
    s_add_u32 s75, s75, {WS_F2:#x}
    v_lshl_add_u32 v20, v22, 7, s75
    s_mul_i32 s75, s74, 18432
    s_add_u32 s75, s75, {WS_O:#x}
    v_lshl_add_u32 v8, v2, 4, s75
    v_lshlrev_b32 v9, 8, v19
    v_lshl_add_u32 v9, v22, 3, v9
    s_add_u32 s75, s75, 16384
    v_add_u32 v9, s75, v9
    s_lshl_b32 s74, s74, 4
    v_add_u32 v25, s74, v22
    v_mul_u32_u24 v25, 2304, v25
    s_lshl_b32 s75, s8, 7
    s_add_u32 s75, s75, 1152
    v_add_u32 v25, s75, v25
    v_lshl_add_u32 v25, v29, 5, v25
    v_lshrrev_b32 v27, 1, v19
    v_lshl_add_u32 v25, v27, 4, v25
    s_waitcnt vmcnt(0)
    s_barrier
    """)
    stamp()
    NPRE=opts.get("npre",4)
    def gf(K,T):
        return (184+16*K+4*T) if K<NPRE else (32+16*(K%2)+4*T)
    def greads(K):
        for T in range(4):
            if K==16:
                e(f"v_add_u32 v{10+T}, 0x10000, v{10+T}")
            off=(K%16)*4096
            e(f"ds_read_b64_tr_b16 {pr(gf(K,T))}, v{10+T} offset:{off}")
            e(f"ds_read_b64_tr_b16 {pr(gf(K,T)+2)}, v{10+T} offset:{off+512}")
        return 8
    for K in range(NPRE+1): greads(K)
    e("s_movk_i32 s77, 30000")
    a.label("B_h2_poll")
    e("""
    buffer_load_dword v21, v20, s[52:55], 0 offen sc1
    s_waitcnt vmcnt(0)
    v_cmp_ne_u32 vcc, s9, v21
    s_cbranch_vccz B_h2_done
    s_sleep 2
    s_sub_u32 s77, s77, 1
    s_cbranch_scc0 B_h2_poll
    """)
    a.label("B_h2_done")
    stamp()
    vq.q=[]
    def of(K): return 112+4*K
    e("s_movk_i32 s74, 4096\ns_movk_i32 s75, 8192\ns_movk_i32 s76, 12288")
    for K in range(16):
        so=["0","s74","s75","s76"][K//4]
        e(f"buffer_load_dwordx4 {q4(of(K))}, v8, s[52:55], {so} offen offset:{(K%4)*1024} sc1"); vq.add(f"O{K}")
    for kk in range(2):
        for h in range(2):
            e(f"buffer_load_dwordx2 {pr(of(16+kk)+2*h)}, v9, s[52:55], 0 offen offset:{kk*1024+h*128} sc1"); vq.add(f"O{16+kk}")
    GA=[72+4*T for T in range(4)]
    for K in range(18):
        n = greads(K+1) if (K+1<18 and K+1>NPRE) else 0
        vq.wait(f"O{K}", extra=f" lgkmcnt({n})")
        for T in range(4):
            c = "0" if K==0 else q4(GA[T])
            e(f"v_mfma_f32_16x16x32_bf16 {q4(GA[T])}, {q4(gf(K,T))}, {q4(of(K))}, {c}")
    for T in range(4):
        e(f"v_cvt_pk_bf16_f32 v{96+2*T}, v{GA[T]}, v{GA[T]+1}\nv_cvt_pk_bf16_f32 v{97+2*T}, v{GA[T]+2}, v{GA[T]+3}")
    for p in range(2):
        e(f"v_permlane16_swap_b32 v{96+4*p}, v{98+4*p}\nv_permlane16_swap_b32 v{97+4*p}, v{99+4*p}")
        e(f"buffer_store_dwordx4 {q4(96+4*p)}, v25, s[56:59], 0 offen offset:{64*p}")
    if opts.get("stamps"):
        e("s_waitcnt vmcnt(0)")
        stamp()
        e(f"""
        v_writelane_b32 v31, s82, 20
        s_memtime s[86:87]
        s_waitcnt lgkmcnt(0)
        s_sub_u32 s86, s86, s84
        v_writelane_b32 v31, s86, 21
        s_getreg_b32 s86, hwreg(HW_REG_HW_ID)
        s_getreg_b32 s87, hwreg(HW_REG_XCC_ID)
        v_writelane_b32 v31, s86, 22
        v_writelane_b32 v31, s87, 23
        s_lshl_b32 s74, s2, 2
        s_add_u32 s74, s74, s6
        s_lshl_b32 s74, s74, 8
        s_add_u32 s74, s74, {WS_DBG:#x}
        v_lshl_add_u32 v20, v2, 2, s74
        buffer_store_dword v31, v20, s[52:55], 0 offen
        """)
    e("s_endpgm")
    a.label("O_entry")
    e(f"""
    s_sub_u32 s3, s2, {opts["NA"]+256}
    s_and_b32 s10, s3, 7
    s_lshr_b32 s11, s3, 3
    s_lshl_b32 s7, s10, 2
    s_add_u32 s7, s7, s11
    s_mov_b32 s8, 8
    v_lshrrev_b32 v1, 6, v0
    v_and_b32 v2, 63, v0
    v_readfirstlane_b32 s6, v1
    v_lshrrev_b32 v19, 4, v2
    v_and_b32 v22, 15, v2
    v_bfe_u32 v23, v2, 2, 2
    v_and_b32 v24, 3, v2
    v_mov_b32 v30, 0
    v_mov_b32 v31, 0
    v_mov_b32 v16, 0
    v_mov_b32 v17, 0
    s_and_b32 s15, s6, 1
    s_lshl_b32 s71, s6, 10
    s_waitcnt lgkmcnt(0)
    s_mov_b32 s52, s42
    s_mov_b32 s53, s43
    s_mov_b32 s54, 0x1000000
    s_mov_b32 s55, 0x00020000
    s_mov_b32 s56, s38
    s_mov_b32 s57, s39
    s_mov_b32 s58, {2048*2304}
    s_mov_b32 s59, 0x00020000
    s_movk_i32 s77, 20000
    """)
    a.label("O_nonce_poll")
    e("""
    s_sleep 16
    global_load_dword v18, v30, s[40:41] sc1
    s_waitcnt vmcnt(0)
    v_readfirstlane_b32 s9, v18
    s_sub_u32 s77, s77, 1
    s_cbranch_scc1 O_nonce_ok
    s_cmp_eq_u32 s9, 0
    s_cbranch_scc1 O_nonce_poll
    """)
    a.label("O_nonce_ok")
    e("s_mov_b32 s10, 0\ns_branch P5_entry")
```

```python
import sys
from asmlib import *
from gen_a import gen_a
NAME="concat_heads__ssm_conv_s4d__linear_kernel_hedgehog__prompt"
NB=256; NA=144; NO=32
def main(out, with_b=True, opts={}):
    a=Asm()
    opts["NA"]=NA
    if opts.get("stamps"): a.e("s_memrealtime s[82:83]\ns_memtime s[84:85]")
    a.e(f"""
    s_load_dwordx16 s[16:31], s[0:1], 0
    s_load_dwordx8 s[32:39], s[0:1], 64
    s_load_dwordx4 s[40:43], s[0:1], 96
    s_cmp_lt_u32 s2, {NA}
    s_cbranch_scc1 A_entry
    s_cmp_ge_u32 s2, {NB+NA+NO if with_b else 0}
    s_cbranch_scc1 L_exit
    """)
    if with_b:
        a.e(f"s_cmp_ge_u32 s2, {NB+NA}\ns_cbranch_scc1 O_entry")
        from gen_b import gen_b
        gen_b(a, opts)
    a.label("L_exit")
    a.e("s_endpgm")
    gen_a(a, NB, opts)
    a.pad()
    hdr = open("cdna_kernels/"+NAME+".s.ref").read().split("\n")
    head = [l for l in hdr if l.startswith(";") and "@launch" not in l and "Override" not in l and "grid=ceil" not in l]
    txt = "\n".join(head[:15]) + f"""
; generated by work/gen.py (hand-designed generator)
; @launch grid=({NB+NA+NO},1,1) block=(256,1,1) lds=81920
.amdgcn_target "amdgcn-amd-amdhsa--gfx950"
.text
.globl {NAME}_kernel
.p2align 8
.type {NAME}_kernel,@function
{NAME}_kernel:
""" + a.text() + f"""
.section .rodata,"a"
.p2align 6
.amdhsa_kernel {NAME}_kernel
  .amdhsa_next_free_vgpr 256
  .amdhsa_next_free_sgpr 96
  .amdhsa_accum_offset 256
  .amdhsa_group_segment_fixed_size 0
  .amdhsa_kernarg_size 112
  .amdhsa_user_sgpr_count 2
  .amdhsa_user_sgpr_kernarg_segment_ptr 1
  .amdhsa_system_sgpr_workgroup_id_x 1
.end_amdhsa_kernel
"""
    open(out,"w").write(txt)
if __name__=="__main__":
    opts={}
    for x in sys.argv[2:]:
        if "=" in x:
            k,v=x.split("="); opts[k]=eval(v)
    main(sys.argv[1], with_b=("nob" not in sys.argv), opts=opts)
```

```python
WS_UT=0x500000; WS_YT=0xa00000; WS_FA1=0x440000; WS_FA2=0x450000
RS=17664; MOFF=4224; U1OFF=8448; U0OFF=13024
LOG2E=0x3fb8aa3b; NLOG2E=0xbfb8aa3b; INV2PI=0x3e22f983
XROWS = {0:[0],1:[1],2:[2],3:[3],4:[4],5:[5],6:[6],7:[7],256:[8],258:[9],260:[10,12],262:[13],264:[14],
         512:[16],516:[17],520:[18],768:[20],772:[21],776:[22],1024:[24],1032:[25],1280:[26],1288:[27],
         1536:[28],1544:[29],1792:[30],1800:[31]}
def pr(r): return f"v[{r}:{r+1}]"
def q4(r): return f"v[{r}:{r+3}]"

def gen_a(a, NB, opts={}):
    e=a.e
    sn=[0]
    def stamp():
        if not opts.get("stamps"): return
        i=sn[0]; sn[0]+=1
        e(f"{'s_memtime' if opts.get('cyc') else 's_memrealtime'} s[80:81]\ns_waitcnt lgkmcnt(0)\nv_writelane_b32 v79, s80, {i}")
    a.label("A_entry")
    def poll(name, vaddr, vt):
        e("s_movk_i32 s77, 20000")
        a.label(name+"_poll")
        e(f"""
        buffer_load_dword v{vt}, v{vaddr}, s[52:55], 0 offen sc1
        s_waitcnt vmcnt(0)
        v_cmp_ne_u32 vcc, s9, v{vt}
        s_cbranch_vccz {name}_done
        s_sleep 2
        s_sub_u32 s77, s77, 1
        s_cbranch_scc0 {name}_poll
        """)
        a.label(name+"_done")
    e(f"""
    s_mov_b32 s4, s2
    s_memrealtime s[76:77]
    s_and_b32 s3, s4, 15
    s_lshr_b32 s5, s4, 4
    v_lshrrev_b32 v1, 6, v0
    v_and_b32 v2, 63, v0
    v_readfirstlane_b32 s6, v1
    s_lshl_b32 s7, s4, 2
    s_add_u32 s7, s7, s6
    s_lshl_b32 s8, s7, 8
    v_lshl_add_u32 v3, v2, 2, s8
    s_lshl_b32 s11, s7, 1
    v_mov_b32 v28, s11
    s_mul_i32 s10, s6, {RS}
    s_lshl_b32 s11, s3, 7
    s_lshl_b32 s12, s6, 5
    s_add_u32 s11, s11, s12
    v_lshrrev_b32 v4, 3, v2
    v_add_u32 v4, s11, v4
    v_mul_u32_u24 v4, 1152, v4
    v_bfe_u32 v5, v2, 4, 1
    v_lshlrev_b32 v5, 1, v5
    v_and_b32 v6, 7, v2
    v_xor_b32 v5, v5, v6
    v_lshl_add_u32 v4, v5, 4, v4
    s_lshl_b32 s12, s5, 7
    v_add_u32 v4, s12, v4
    v_xor_b32 v5, 64, v4
    v_add_u32 v5, {8*1152}, v5
    s_lshl_b32 s56, s6, 12
    s_movk_i32 s57, 18432
    v_mov_b32 v78, 0
    s_waitcnt lgkmcnt(0)
    s_mov_b32 s44, s16
    s_mov_b32 s45, s17
    s_mov_b32 s46, {2048*1152}
    s_mov_b32 s47, 0x00020000
    s_cmp_lg_u32 s7, 0
    s_cbranch_scc1 A_nononce
    s_or_b32 s76, s76, 1
    v_mov_b32 v9, s76
    global_store_dword v78, v9, s[40:41] sc1
    """)
    a.label("A_nononce")
    for j in range(4):
        e(f"s_add_u32 m0, s56, {j*1024}")
        e(f"buffer_load_dwordx4 v{4+(j&1)}, s[44:47], {'0' if j<2 else 's57'} offen lds")
    e(f"""
    global_load_dword v22, v3, s[18:19]
    global_load_ushort v26, v28, s[26:27]
    global_load_dword v23, v3, s[20:21]
    global_load_dword v24, v3, s[22:23]
    global_load_dword v25, v3, s[24:25]
    global_load_ushort v27, v28, s[28:29]
    s_mov_b32 s48, s38
    s_mov_b32 s49, s39
    s_mov_b32 s50, {2048*2304}
    s_mov_b32 s51, 0x00020000
    s_mov_b32 s52, s42
    s_mov_b32 s53, s43
    s_mov_b32 s54, 0x1000000
    s_mov_b32 s55, 0x00020000
    v_lshrrev_b32 v74, 4, v2
    v_bfe_u32 v75, v2, 2, 2
    v_and_b32 v76, 3, v2
    v_and_b32 v77, 15, v2
    v_lshrrev_b32 v7, 1, v75
    v_and_b32 v8, 1, v74
    v_lshl_or_b32 v7, v8, 1, v7
    v_lshlrev_b32 v7, 1, v7
    v_lshrrev_b32 v8, 1, v76
    s_lshl_b32 s11, s6, 1
    v_add_u32 v8, s11, v8
    v_xor_b32 v7, v7, v8
    v_lshlrev_b32 v7, 4, v7
    v_and_b32 v8, 1, v76
    v_lshl_add_u32 v7, v8, 3, v7
    v_lshl_add_u32 v8, v74, 3, v75
    v_lshl_add_u32 v6, v8, 7, v7
    s_lshl_b32 s11, s5, 6
    s_lshl_b32 s12, s6, 4
    s_add_u32 s11, s11, s12
    s_lshl_b32 s11, s11, 12
    s_lshl_b32 s12, s3, 8
    s_add_u32 s11, s11, s12
    s_add_u32 s11, s11, {WS_UT:#x}
    v_lshlrev_b32 v7, 12, v77
    v_lshl_add_u32 v7, v74, 4, v7
    v_add_u32 v7, s11, v7
    s_waitcnt vmcnt(6)
    s_barrier
    global_load_dword v9, v78, s[40:41] sc1
    """)
    for i in range(4):
        e(f"ds_read_b64_tr_b16 {pr(96+4*i)}, v6 offset:{4096*i}")
        e(f"ds_read_b64_tr_b16 {pr(98+4*i)}, v6 offset:{4096*i+512}")
    for i in range(4):
        e(f"s_waitcnt lgkmcnt({6-2*i})")
        e(f"buffer_store_dwordx4 {q4(96+4*i)}, v7, s[52:55], 0 offen offset:{64*i} sc1")
    e("s_barrier")
    if opts.get("stamps"): e("v_mov_b32 v79, 0")
    stamp()
    e(f"""
    v_mul_u32_u24 v58, 264, v2
    v_add_u32 v58, s10, v58
    v_lshrrev_b32 v60, 5, v2
    v_lshl_add_u32 v60, v60, 2, v75
    v_mul_u32_u24 v59, {8*264}, v60
    v_and_b32 v61, 1, v74
    v_lshl_add_u32 v59, v61, 5, v59
    v_lshl_add_u32 v59, v76, 3, v59
    v_add_u32 v59, s10, v59
    """)
    for i in range(16): e(f"v_mov_b32 v{80+i}, 0")
    e(f"""
    s_waitcnt vmcnt(5)
    v_lshlrev_b32 v26, 16, v26
    v_mul_f32 v26, {LOG2E:#x}, v26
    v_exp_f32 v26, v26
    v_lshlrev_b32 v62, 16, v22
    v_and_b32 v63, 0xffff0000, v22
    v_cvt_pk_bf16_f32 v26, v26, v26
    v_mul_f32 v62, {LOG2E:#x}, v62
    v_mul_f32 v63, {LOG2E:#x}, v63
    v_exp_f32 v62, v62
    v_exp_f32 v63, v63
    v_lshlrev_b32 v28, 16, v26
    v_lshlrev_b32 v27, 16, v27
    v_cvt_pk_bf16_f32 v62, v62, v63
    v_add_f32 v29, v28, v28
    v_lshlrev_b32 v30, 16, v62
    v_and_b32 v34, 0xffff0000, v62
    v_mul_f32 v30, v30, v28
    v_mul_f32 v34, v34, v28
    v_mul_f32 v30, {NLOG2E:#x}, v30
    v_mul_f32 v34, {NLOG2E:#x}, v34
    v_lshlrev_b32 v31, 16, v23
    v_and_b32 v35, 0xffff0000, v23
    v_mul_f32 v31, v31, v28
    v_mul_f32 v35, v35, v28
    v_mul_f32 v31, {INV2PI:#x}, v31
    v_mul_f32 v35, {INV2PI:#x}, v35
    v_lshlrev_b32 v32, 16, v24
    v_and_b32 v36, 0xffff0000, v24
    v_lshlrev_b32 v33, 16, v25
    v_and_b32 v37, 0xffff0000, v25
    v_mul_f32 v32, v32, v29
    v_mul_f32 v36, v36, v29
    v_mul_f32 v33, v33, v29
    v_mul_f32 v37, v37, v29
    v_xor_b32 v33, 0x80000000, v33
    v_xor_b32 v37, 0x80000000, v37
    s_mov_b32 s13, 2
    v_mov_b32 v68, 1.0
    v_mov_b32 v69, 0
    """)
    stamp()
    a.label("A_pass")
    for (w,mul) in [(38,None),(41,0x41000000),(44,0x43800000)]:
        if mul is None:
            e(f"v_exp_f32 v48, v30\nv_fract_f32 v49, v31")
        else:
            e(f"v_mul_f32 v48, {mul:#x}, v30\nv_mul_f32 v49, {mul:#x}, v31\nv_exp_f32 v48, v48\nv_fract_f32 v49, v49")
        e(f"v_cos_f32 v{w}, v49\nv_sin_f32 v{w+1}, v49")
        e(f"v_mul_f32 v{w}, v{w}, v48\nv_mul_f32 v{w+1}, v{w+1}, v48\nv_xor_b32 v{w+2}, 0x80000000, v{w+1}")
    def cmul(d, z, w, conj):
        wi,nwi=(w+2,w+1) if conj else (w+1,w+2)
        e(f"v_mul_f32 v{d[0]}, v{z[0]}, v{w}\nv_mul_f32 v{d[1]}, v{z[1]}, v{w}")
        e(f"v_fmac_f32 v{d[0]}, v{z[1]}, v{nwi}\nv_fmac_f32 v{d[1]}, v{z[0]}, v{wi}")
    cv=[0]
    def put4(vals, off8):
        t=50+4*(cv[0]%2); cv[0]+=1
        for c in range(2):
            e(f"v_cvt_pk_bf16_f32 v{t+2*c}, v{vals[0][c]}, v{vals[1][c]}")
            e(f"v_cvt_pk_bf16_f32 v{t+2*c+1}, v{vals[2][c]}, v{vals[3][c]}")
        e(f"ds_write2_b64 v58, {pr(t)}, {pr(t+2)} offset0:{off8} offset1:{off8+8}")
    X={0:(32,33)}
    nx=[0]
    def nX(p, src, w):
        X[p]=(160+2*nx[0],161+2*nx[0]); nx[0]+=1
        cmul(X[p], X[src], w, True)
    for p in range(1,9):
        nX(p,p-1,38) if p<8 else nX(8,0,41)
        if p==3: put4([X[i] for i in (0,1,2,3)],0)
        if p==7: put4([X[i] for i in (4,5,6,7)],1)
    for p in (256,258,260,262,264): nX(p,p-256,44)
    put4([X[i] for i in (256,258,260,260)],2); put4([X[i] for i in (260,262,264,264)],3)
    for b,o in ((512,4),(768,5)):
        for d in (0,4,8): nX(b+d,b+d-256,44)
        put4([X[b],X[b+4],X[b+8],X[b+8]],o)
    for b,o in ((1024,6),(1536,7)):
        for p in (b,b+8,b+256,b+264): nX(p,p-256,44)
        put4([X[b],X[b+8],X[b+256],X[b+264]],o)
    Y={0:(68,69),1:(41,42)}
    for j in range(2,32):
        Y[j]=(224+2*(j%8),225+2*(j%8))
        cmul(Y[j],Y[j-1],41,False)
        if j%4==3: put4([Y[j-3],Y[j-2],Y[j-1],Y[j]],16+j//4)
    if opts.get("stamps"):
        e("s_cmp_eq_u32 s13, 1\ns_cbranch_scc1 A_skipst")
        stamp()
        e("s_waitcnt vmcnt(0)")
        stamp()
        a.label("A_skipst")
    e("s_waitcnt vmcnt(0)\ns_movk_i32 s77, 20000\nv_readfirstlane_b32 s9, v9\ns_cmp_lg_u32 s9, 0\ns_cbranch_scc1 A_nonce_ok")
    a.label("A_nonce_poll")
    e("""
    s_sleep 1
    global_load_dword v9, v78, s[40:41] sc1
    s_waitcnt vmcnt(0)
    v_readfirstlane_b32 s9, v9
    s_sub_u32 s77, s77, 1
    s_cbranch_scc1 A_nonce_ok
    s_cmp_eq_u32 s9, 0
    s_cbranch_scc1 A_nonce_poll
    """)
    a.label("A_nonce_ok")
    e(f"""
    s_lshl_b32 s11, s4, 7
    s_lshl_b32 s12, s6, 2
    s_add_u32 s58, s11, s12
    s_add_u32 s11, s58, {WS_FA1:#x}
    v_mov_b32 v10, s11
    v_mov_b32 v11, s9
    s_mov_b64 exec, 1
    buffer_store_dword v11, v10, s[52:55], 0 offen sc1
    s_mov_b64 exec, -1
    """)
    for st in range(8):
        for i in range(4):
            e(f"ds_read_b64_tr_b16 {pr(96+8*st+2*i)}, v59 offset:{264*st+64*i}")
        if st==2:
            e("v_mov_b32 v30, v34\nv_mov_b32 v31, v35\nv_mov_b32 v32, v36\nv_mov_b32 v33, v37")
        if st>=3:
            e(f"s_waitcnt lgkmcnt(12)")
            e(f"v_mfma_f32_32x32x16_bf16 v[80:95], {q4(96+8*(st-3))}, {q4(100+8*(st-3))}, v[80:95]")
    for st in range(5,8):
        e(f"s_waitcnt lgkmcnt({4*(7-st)})")
        e(f"v_mfma_f32_32x32x16_bf16 v[80:95], {q4(96+8*st)}, {q4(100+8*st)}, v[80:95]")
    e("""
    s_sub_u32 s13, s13, 1
    s_cmp_lg_u32 s13, 0
    s_cbranch_scc1 A_pass
    """)
    stamp()
    e(f"""
    s_lshl_b32 s11, s5, 11
    s_lshr_b32 s12, s3, 2
    s_lshl_b32 s12, s12, 2
    s_add_u32 s11, s11, s12
    s_add_u32 s11, s11, {WS_FA1:#x}
    v_lshl_add_u32 v10, v77, 7, s11
    s_lshl_b32 s59, s7, 12
    s_add_u32 s11, s59, {WS_UT:#x}
    v_lshl_add_u32 v12, v2, 4, s11
    v_subrev_u32 v13, 4, v12
    """)
    poll("A_h1", 10, 11)
    stamp()
    for j in range(4):
        e(f"buffer_load_dwordx4 {q4(112+8*j)}, v12, s[52:55], 0 offen offset:{1024*j} sc1")
        e(f"buffer_load_dword v{14+j}, v13, s[52:55], 0 offen offset:{1024*j} sc1")
    e(f"""
    v_and_b32 v60, 31, v2
    v_lshrrev_b32 v61, 5, v2
    v_lshlrev_b32 v62, 4, v60
    v_sub_u32 v62, s10, v62
    v_lshlrev_b32 v63, 3, v61
    v_sub_u32 v64, v62, v63
    v_add_u32 v64, 3576, v64
    v_lshlrev_b32 v63, 9, v61
    v_sub_u32 v65, v62, v63
    v_sub_u32 v66, v65, v63
    v_add_u32 v65, 3056, v65
    v_add_u32 v66, 1520, v66
    v_add_u32 v67, {MOFF+4}, v64
    v_add_u32 v68, {MOFF+4}, v65
    v_add_u32 v69, {MOFF+4}, v66
    v_cmp_eq_u32 vcc, 0, v2
    v_cndmask_b32 v27, 0, v27, vcc
    v_and_b32 v60, 1, v2
    v_cmp_eq_u32 vcc, 0, v60
    s_mov_b32 s14, 0x05040100
    s_mov_b32 s15, 0x07060302
    v_lshl_add_u32 v70, v2, 4, s10
    v_add_f32 v80, v80, v27
    v_cndmask_b32 v30, v93, v92, vcc
    v_cndmask_b32 v31, v95, v94, vcc
    v_cvt_pk_bf16_f32 v96, v83, v82
    v_cvt_pk_bf16_f32 v97, v81, v80
    v_cvt_pk_bf16_f32 v98, v86, v85
    v_cvt_pk_bf16_f32 v99, v84, v84
    v_cvt_pk_bf16_f32 v100, v90, v90
    v_cvt_pk_bf16_f32 v101, v89, v89
    v_cvt_pk_bf16_f32 v102, v89, v88
    v_cvt_pk_bf16_f32 v103, v88, v88
    v_cvt_pk_bf16_f32 v104, v93, v93
    v_cvt_pk_bf16_f32 v105, v93, v30
    v_cvt_pk_bf16_f32 v106, v92, v92
    v_cvt_pk_bf16_f32 v107, v92, v92
    v_cvt_pk_bf16_f32 v108, v95, v95
    v_cvt_pk_bf16_f32 v109, v95, v31
    v_cvt_pk_bf16_f32 v110, v94, v94
    v_cvt_pk_bf16_f32 v111, v94, v94
    ds_write_b64 v64, v[96:97] offset:512
    ds_write_b64 v64, v[98:99]
    ds_write_b128 v65, v[100:103]
    ds_write_b128 v66, v[104:107] offset:512
    ds_write_b128 v66, v[108:111]
    ds_write2_b32 v67, v96, v97 offset0:128 offset1:129
    ds_write2_b32 v67, v98, v99 offset0:0 offset1:1
    ds_write2_b32 v68, v100, v101 offset0:0 offset1:1
    ds_write2_b32 v68, v102, v103 offset0:2 offset1:3
    ds_write2_b32 v69, v104, v105 offset0:128 offset1:129
    ds_write2_b32 v69, v106, v107 offset0:130 offset1:131
    ds_write2_b32 v69, v108, v109 offset0:0 offset1:1
    ds_write2_b32 v69, v110, v111 offset0:2 offset1:3
    v_mov_b32 v32, 0
    v_mov_b32 v33, 0
    v_lshl_add_u32 v34, v2, 3, s10
    v_lshl_add_u32 v58, v2, 2, s10
    s_mov_b64 exec, 0xffff
    ds_write_b32 v58, v32 offset:4096
    ds_write_b32 v58, v32 offset:{MOFF+4100}
    s_mov_b32 exec_lo, -1
    s_mov_b32 exec_hi, 0x00ffffff
    ds_write_b64 v34, v[32:33] offset:{U1OFF}
    ds_write_b64 v34, v[32:33] offset:{U0OFF}
    s_mov_b64 exec, -1
    s_waitcnt vmcnt(0)
    """)
    stamp()
    e("s_mov_b64 exec, 1\nv_mov_b32 v14, 0\ns_mov_b64 exec, -1")
    for j in range(4):
        b=112+8*j
        e(f"v_alignbit_b32 v{b+4}, v{b}, v{14+j}, 16")
        for k in range(1,4): e(f"v_alignbit_b32 v{b+4+k}, v{b+k}, v{b+k-1}, 16")
        e(f"ds_write_b128 v70, {q4(b)} offset:{U1OFF+448+1024*j}")
        e(f"ds_write_b128 v70, {q4(b+4)} offset:{U0OFF+448+1024*j}")
    e(f"""
    v_and_b32 v60, 15, v2
    v_lshrrev_b32 v61, 4, v2
    v_lshlrev_b32 v61, 4, v61
    v_add_u32 v61, s10, v61
    v_lshrrev_b32 v62, 1, v60
    v_lshl_add_u32 v72, v62, 6, v61
    v_mov_b32 v63, {U1OFF+448}
    v_mov_b32 v64, {U0OFF+448}
    v_cndmask_b32 v63, v63, v64, vcc
    v_add_u32 v72, v72, v63
    v_lshlrev_b32 v62, 2, v60
    v_sub_u32 v73, v61, v62
    v_mov_b32 v63, {4092-3584}
    v_mov_b32 v64, {MOFF+4096-3584}
    v_cndmask_b32 v63, v63, v64, vcc
    v_add_u32 v73, v73, v63
    """)
    for i in range(32): e(f"v_mov_b32 v{224+i}, 0")
    def reads(S):
        L=[]
        for i in range(8):
            L.append(f"ds_read_b128 {q4(S+4*i)}, v72 offset:{512*i}")
            L.append(f"ds_read_b64 {pr(S+32+4*i)}, v73 offset:{3584-512*i}")
            L.append(f"ds_read_b64 {pr(S+34+4*i)}, v73 offset:{3584-512*i+8}")
        return L
    L=reads(96)
    for i,x in enumerate(L):
        e(x)
        if i==11: e("s_waitcnt lgkmcnt(4)")
    stamp()
    e("s_mov_b32 s13, 4")
    a.label("A_conv")
    for (S,Sn) in [(96,160),(160,96)]:
        e("v_subrev_u32 v72, 64, v72\nv_subrev_u32 v73, 64, v73\ns_waitcnt lgkmcnt(0)")
        L=reads(Sn)
        pairs=[(ee,q) for q in range(8) for ee in range(8-q)]
        for i,(ee,q) in enumerate(pairs):
            J=ee+q
            e(f"v_mfma_f32_16x16x32_bf16 {q4(224+4*J)}, {q4(S+4*ee)}, {q4(S+32+4*q)}, {q4(224+4*J)}")
            if i<24: e(L[i])
    e("""
    s_sub_u32 s13, s13, 1
    s_cmp_lg_u32 s13, 0
    s_cbranch_scc1 A_conv
    """)
    stamp()
    e(f"""
    v_lshlrev_b32 v61, 7, v74
    v_lshl_add_u32 v61, v77, 2, v61
    v_add_u32 v61, s10, v61
    s_add_u32 s11, s59, {WS_YT:#x}
    v_lshl_add_u32 v12, v2, 4, s11
    s_waitcnt lgkmcnt(0)
    """)
    for J in range(8):
        e(f"v_cvt_pk_bf16_f32 v{96+2*J}, v{224+4*J}, v{225+4*J}")
        e(f"v_cvt_pk_bf16_f32 v{97+2*J}, v{226+4*J}, v{227+4*J}")
        e(f"ds_write_b32 v61, v{96+2*J} offset:{512*J}")
        e(f"ds_write_b32 v61, v{97+2*J} offset:{512*J+64}")
    for j in range(4): e(f"ds_read_b128 {q4(112+4*j)}, v70 offset:{1024*j}")
    for j in range(4):
        e(f"s_waitcnt lgkmcnt({3-j})")
        e(f"buffer_store_dwordx4 {q4(112+4*j)}, v12, s[52:55], 0 offen offset:{1024*j} sc1")
    e(f"""
    s_add_u32 s11, s58, {WS_FA2:#x}
    v_mov_b32 v10, s11
    v_mov_b32 v11, s9
    s_lshl_b32 s11, s5, 11
    s_lshl_b32 s12, s6, 9
    s_add_u32 s11, s11, s12
    s_add_u32 s11, s11, {WS_FA2:#x}
    v_lshl_add_u32 v13, v75, 7, s11
    v_lshl_add_u32 v13, v76, 2, v13
    s_lshl_b32 s11, s5, 6
    s_lshl_b32 s12, s6, 4
    s_add_u32 s11, s11, s12
    s_lshl_b32 s11, s11, 12
    s_lshl_b32 s12, s3, 8
    s_add_u32 s11, s11, s12
    s_add_u32 s11, s11, {WS_YT:#x}
    v_lshlrev_b32 v14, 12, v74
    v_lshl_add_u32 v14, v77, 4, v14
    v_add_u32 v14, s11, v14
    v_mul_u32_u24 v15, 272, v74
    v_lshl_add_u32 v15, v77, 4, v15
    v_add_u32 v15, s10, v15
    v_lshrrev_b32 v16, 1, v74
    v_mul_u32_u24 v16, {RS}, v16
    v_and_b32 v17, 1, v74
    v_lshl_add_u32 v17, v17, 3, v75
    v_mul_u32_u24 v17, 272, v17
    v_add_u32 v16, v16, v17
    v_lshl_add_u32 v16, v76, 3, v16
    s_lshl_b32 s11, s6, 6
    v_add_u32 v16, s11, v16
    s_lshl_b32 s11, s3, 7
    s_lshl_b32 s12, s6, 5
    s_add_u32 s11, s11, s12
    v_add_u32 v17, s11, v77
    v_mul_u32_u24 v17, 2304, v17
    v_lshl_add_u32 v17, v74, 4, v17
    s_lshl_b32 s11, s5, 7
    v_add_u32 v17, s11, v17
    s_movk_i32 s60, 16384
    s_mov_b32 s61, 32768
    s_mov_b32 s62, 49152
    s_mov_b32 s63, {16*2304}
    s_waitcnt vmcnt(0)
    s_mov_b64 exec, 1
    buffer_store_dword v11, v10, s[52:55], 0 offen sc1
    s_mov_b64 exec, -1
    """)
    stamp()
    poll("A_h2", 13, 11)
    stamp()
    for j in range(4):
        e(f"buffer_load_dwordx4 {q4(112+4*j)}, v14, s[52:55], {['0','s60','s61','s62'][j]} offen sc1")
    for j in range(4):
        e(f"s_waitcnt vmcnt({3-j})")
        e(f"ds_write_b128 v15, {q4(112+4*j)} offset:{4*272*j}")
    e("s_waitcnt lgkmcnt(0)\ns_barrier")
    for n in range(2):
        for h in range(2):
            for ee in range(2):
                e(f"ds_read_b64_tr_b16 {pr(128+8*n+4*h+2*ee)}, v16 offset:{2*RS*h+4*272*ee+32*n}")
    for n in range(2):
        for h in range(2):
            e(f"s_waitcnt lgkmcnt({6-4*n-2*h})")
            e(f"buffer_store_dwordx4 {q4(128+8*n+4*h)}, v17, s[48:51], {'0' if n==0 else 's63'} offen offset:{64*h}")
    if opts.get("stamps"):
        stamp()
        e("s_waitcnt vmcnt(0)")
        stamp()
        e(f"""
        v_writelane_b32 v79, s82, 20
        s_memtime s[86:87]
        s_waitcnt lgkmcnt(0)
        s_sub_u32 s86, s86, s84
        v_writelane_b32 v79, s86, 21
        s_getreg_b32 s86, hwreg(HW_REG_HW_ID)
        s_getreg_b32 s87, hwreg(HW_REG_XCC_ID)
        v_writelane_b32 v79, s86, 22
        v_writelane_b32 v79, s87, 23
        """)
        if opts.get("dbgt")=="A":
            e(f"""
            v_writelane_b32 v79, s82, 14
            v_subrev_u32 v21, s9, v79
            v_add_u32 v21, 1000, v21
            v_cmp_ne_u32 vcc, 0, v79
            v_cndmask_b32 v21, 0, v21, vcc
            v_lshlrev_b32 v20, 2, v2
            v_add_u32 v20, 4, v20
            s_mov_b64 exec, 0x7fff
            global_atomic_umax v20, v21, s[40:41] sc1
            s_mov_b64 exec, -1
            """)
        e(f"""
        s_lshl_b32 s74, s2, 2
        s_add_u32 s74, s74, s6
        s_lshl_b32 s74, s74, 8
        s_add_u32 s74, s74, 0x800000
        v_lshl_add_u32 v20, v2, 2, s74
        global_store_dword v20, v79, s[42:43]
        """)
    e("s_endpgm")
```

```python
LOG2E=0x3fb8aa3b; NLOG2E=0xbfb8aa3b
WRING=32768; PG9=73728
WBD=73728; WBDZ=WBD+36*80
KVBD=WBD+2944
DUMP=KVBD+4480
P9R=DUMP+72+8
PH=0; VV=21504
WS_PART=0; WS_O=0x100000; WS_F1=0x400000; WS_F2=0x410000; WS_DBG=0x800000
BIG=0x7f000000
def pr(r): return f"v[{r}:{r+1}]"
def q4(r): return f"v[{r}:{r+3}]"
def xf(t,n): return 112+8*t+4*n
def acc(T,n): return 72+8*T+4*n
def wf(b,T): return 32+20*b+4*T

class VQ:
    def __init__(s,a): s.q=[]; s.a=a
    def add(s,tag): s.q.append(tag)
    def n_after(s,tags):
        idx=max(i for i,t in enumerate(s.q) if t in tags)
        return len(s.q)-1-idx
    def wait(s,*tags,extra=""):
        n=s.n_after(tags); assert n<=63
        s.a.e(f"s_waitcnt vmcnt({n}){extra}")

def softmax(e, Z, outs, tm, ts):
    z=[Z[i//4]+i%4 for i in range(18)]
    e(f"v_max3_f32 v{tm}, v{z[0]}, v{z[1]}, v{z[2]}")
    for i in range(3,17,2): e(f"v_max3_f32 v{tm}, v{tm}, v{z[i]}, v{z[i+1]}")
    e(f"v_max_f32 v{tm}, v{tm}, v{z[17]}")
    for i in range(18): e(f"v_sub_f32 v{z[i]}, v{z[i]}, v{tm}")
    for i in range(18): e(f"v_mul_f32 v{z[i]}, s72, v{z[i]}")
    for i in range(18): e(f"v_exp_f32 v{z[i]}, v{z[i]}")
    e(f"v_add_f32 v{ts}, v{z[0]}, v{z[1]}")
    for i in range(2,18): e(f"v_add_f32 v{ts}, v{ts}, v{z[i]}")
    e(f"v_rcp_f32 v{ts}, v{ts}")
    for i in range(18): e(f"v_mul_f32 v{z[i]}, v{z[i]}, v{ts}")
    for i in range(9):
        e(f"v_cvt_pk_bf16_f32 v{outs[i]}, v{z[2*i]}, v{z[2*i+1]}")

def softmax_fma(e, Z, outs, tm, ts):
    z=[Z[i//4]+i%4 for i in range(18)]
    e(f"v_max3_f32 v{tm}, v{z[0]}, v{z[1]}, v{z[2]}")
    for i in range(3,17,2): e(f"v_max3_f32 v{tm}, v{tm}, v{z[i]}, v{z[i+1]}")
    e(f"v_max_f32 v{tm}, v{tm}, v{z[17]}")
    e(f"v_mul_f32 v{tm}, s72, v{tm}")
    for i in range(18): e(f"v_fma_f32 v{z[i]}, v{z[i]}, s72, -v{tm}")
    for i in range(18): e(f"v_exp_f32 v{z[i]}, v{z[i]}")
    e(f"v_add_f32 v{ts}, v{z[0]}, v{z[1]}")
    for i in range(2,18): e(f"v_add_f32 v{ts}, v{ts}, v{z[i]}")
    e(f"v_rcp_f32 v{ts}, v{ts}")
    for i in range(18): e(f"v_mul_f32 v{z[i]}, v{z[i]}, v{ts}")
    for i in range(9):
        e(f"v_cvt_pk_bf16_f32 v{outs[i]}, v{z[2*i]}, v{z[2*i+1]}")
softmax=softmax_fma

def gen_b(a, opts):
    e=a.e
    vq=VQ(a)
    stamp_n=[0]
    def stamp():
        if not opts.get("stamps"): return
        i=stamp_n[0]; stamp_n[0]+=1
        e(f"{'s_memtime' if opts.get('cyc') else 's_memrealtime'} s[80:81]\ns_waitcnt lgkmcnt(0)\nv_writelane_b32 v31, s80, {i}")
    RA,RB=opts.get("rot",(2,1))
    if opts.get("prio",1): e("s_setprio 3")
    e(f"""
    s_sub_u32 s3, s2, {opts["NA"]}
    s_and_b32 s10, s3, 7
    s_lshr_b32 s11, s3, 3
    s_lshr_b32 s4, s10, 1
    s_lshl_b32 s4, s4, 2
    s_and_b32 s12, s11, 3
    s_add_u32 s4, s4, s12
    s_and_b32 s5, s10, 1
    s_lshl_b32 s5, s5, 3
    s_lshr_b32 s8, s11, 2
    s_add_u32 s5, s5, s8
    s_lshl_b32 s7, s10, 2
    s_add_u32 s7, s7, s12
    v_lshrrev_b32 v1, 6, v0
    v_and_b32 v2, 63, v0
    v_readfirstlane_b32 s6, v1
    s_mul_i32 s13, s4, {RA}
    s_mul_i32 s14, s5, {RB}
    s_add_u32 s13, s13, s14
    s_mul_i32 s14, s13, 7282
    s_lshr_b32 s14, s14, 16
    s_mul_i32 s14, s14, 9
    s_sub_u32 s13, s13, s14
    s_lshl_b32 s64, s13, 7
    s_mul_i32 s66, s13, {64*3456}
    s_mov_b32 s68, s66
    s_lshl_b32 s69, s6, 12
    s_lshl_b32 s70, s6, 11
    s_add_u32 s70, s70, {WRING}
    s_lshl_b32 s71, s6, 10
    s_lshl_b32 s14, s4, 7
    s_lshl_b32 s15, s6, 5
    s_add_u32 s14, s14, s15
    v_lshrrev_b32 v18, 3, v2
    v_add_u32 v3, s14, v18
    v_mul_u32_u24 v3, 1152, v3
    v_lshrrev_b32 v19, 4, v2
    v_and_b32 v20, 7, v2
    v_xor_b32 v21, v20, v19
    v_lshl_add_u32 v4, v21, 4, v3
    v_mov_b32 v3, v4
    v_xor_b32 v4, 64, v4
    v_add_u32 v4, {8*1152}, v4
    s_mul_i32 s14, s5, 72
    s_andn2_b32 s14, s14, 63
    s_and_b32 s15, s6, 1
    s_lshl_b32 s74, s15, 3
    v_lshlrev_b32 v21, 1, v19
    v_or_b32 v21, s74, v21
    v_and_b32 v22, 15, v2
    v_xor_b32 v21, v21, v22
    v_lshrrev_b32 v23, 3, v21
    v_and_b32 v21, 7, v21
    v_lshlrev_b32 v21, 4, v21
    v_mul_u32_u24 v23, 1152, v23
    s_lshl_b32 s75, s6, 3
    v_add_u32 v24, s75, v19
    v_mul_u32_u24 v24, 3456, v24
    v_add3_u32 v5, v21, v23, v24
    s_add_u32 s76, s14, 1152
    v_add_u32 v5, s76, v5
    s_mul_i32 s76, s5, 1296
    v_lshl_add_u32 v25, v0, 2, s76
    s_waitcnt lgkmcnt(0)
    s_mov_b32 s44, s30
    s_mov_b32 s45, s31
    s_mov_b32 s46, {2048*1152}
    s_mov_b32 s47, 0x00020000
    s_mov_b32 s48, s32
    s_mov_b32 s49, s33
    s_mov_b32 s50, {576*3456}
    s_mov_b32 s51, 0x00020000
    s_mov_b32 s60, s34
    s_mov_b32 s61, s35
    s_mov_b32 s62, {32*648}
    s_mov_b32 s63, 0x00020000
    """)
    def dma_x(st):
        slot=st%2
        e("s_add_u32 s65, s64, 18432")
        for i in range(4):
            e(f"s_add_u32 m0, s69, {slot*16384+i*1024}")
            e(f"buffer_load_dwordx4 v{3+(i&1)}, s[44:47], s{64+(i>>1)} offen lds"); vq.add(f"X{st}")
        e("s_add_u32 s64, s64, 128\ns_cmp_eq_u32 s64, 1152\ns_cselect_b32 s64, 0, s64")
    def dma_w(t):
        pg=t%5
        e("s_add_u32 s67, s66, 13824")
        for i in range(2):
            e(f"s_add_u32 m0, s70, {pg*8192+i*1024}")
            e(f"buffer_load_dwordx4 v5, s[48:51], s{66+i} offen lds"); vq.add(f"W{t}")
        e(f"s_add_u32 s66, s66, {32*3456}\ns_cmp_eq_u32 s66, {576*3456}\ns_cselect_b32 s66, 0, s66")
    QP=[3,3,4,4,0,0,1,1,2,2]
    def qloc(t): return WRING+QP[t]*8192+(t&1)*4096 if t<10 else (t-10)*4096
    def dma_q(t):
        e(f"s_add_u32 m0, s71, {qloc(t)}")
        e(f"buffer_load_dwordx4 v7, s[48:51], s68 offen lds"); vq.add(f"Q{t}")
        e(f"s_add_u32 s68, s68, {32*3456}\ns_cmp_eq_u32 s68, {576*3456}\ns_cselect_b32 s68, 0, s68")
    if opts.get("stamps"): e("v_mov_b32 v31, 0")
    stamp()
    dma_x(0); dma_w(0)
    e("buffer_load_dword v26, v25, s[60:63], 0 offen"); vq.add("P0")
    e("buffer_load_dword v27, v25, s[60:63], 0 offen offset:1024"); vq.add("P1")
    dma_w(1); dma_x(1); dma_w(2); dma_w(3); dma_w(4)
    e(f"""
    s_mov_b32 s52, s42
    s_mov_b32 s53, s43
    s_mov_b32 s54, 0x1000000
    s_mov_b32 s55, 0x00020000
    s_mov_b32 s56, s38
    s_mov_b32 s57, s39
    s_mov_b32 s58, {2048*2304}
    s_mov_b32 s59, 0x00020000
    v_mov_b32 v30, 0
    """)
    e(f"""
    s_mov_b32 s72, {LOG2E:#x}
    s_mov_b32 s73, {LOG2E:#x}
    v_and_b32 v21, 1, v19
    v_lshlrev_b32 v21, 1, v21
    s_lshl_b32 s74, s15, 2
    v_or_b32 v21, s74, v21
    v_xor_b32 v21, v21, v20
    v_add_u32 v24, s75, v18
    v_mul_u32_u24 v24, 3456, v24
    v_lshl_add_u32 v7, v21, 4, v24
    v_add_u32 v7, s14, v7
    v_lshrrev_b32 v21, 1, v22
    v_xor_b32 v21, v21, v19
    v_lshlrev_b32 v21, 4, v21
    v_lshl_add_u32 v8, v22, 7, v21
    v_add_u32 v8, s69, v8
    v_xor_b32 v9, 64, v8
    v_bfe_u32 v23, v2, 2, 2
    v_and_b32 v24, 3, v2
    s_and_b32 s74, s5, 7
    v_lshl_add_u32 v28, v19, 3, v23
    v_and_b32 v29, 1, v19
    v_lshl_or_b32 v21, v29, 2, v23
    v_lshlrev_b32 v21, 1, v21
    """)
    def traddr(dst, Preg, rho2, rowshift, base):
        e(f"""
        v_lshrrev_b32 v18, 1, v{Preg}
        v_xor_b32 v18, v18, v{rho2}
        v_lshlrev_b32 v18, 4, v18
        v_and_b32 v20, 1, v{Preg}
        v_lshl_add_u32 v18, v20, 3, v18
        v_lshl_add_u32 v{dst}, v28, {rowshift}, v18
        v_add_u32 v{dst}, {base}, v{dst}
        """)
    for T in range(5):
        if T<4:
            e(f"v_add_u32 v6, s74, v24\nv_add_u32 v6, {4*(T&1)+16*(T>>1)}, v6")
        else:
            e(f"v_and_b32 v6, 1, v24\nv_lshlrev_b32 v6, 4, v6\nv_add_u32 v6, s74, v6\nv_add_u32 v6, 8, v6")
        traddr(10+T, 6, 21, 8, WRING)
    e("v_lshrrev_b32 v21, 1, v23\nv_lshl_or_b32 v21, v29, 1, v21\nv_lshlrev_b32 v21, 1, v21")
    for T in range(3):
        if T<2: e(f"v_add_u32 v6, s74, v24\nv_add_u32 v6, {4*T}, v6")
        else: e(f"v_mov_b32 v6, s74\nv_add_u32 v6, 8, v6")
        traddr(15+T, 6, 21, 7, WRING)
    e(f"""
    v_mul_u32_u24 v18, 7282, v0
    v_lshrrev_b32 v18, 16, v18
    v_mul_u32_u24 v20, 44, v18
    v_lshl_add_u32 v20, v0, 2, v20
    v_add_u32 v21, 256, v0
    v_mul_u32_u24 v18, 7282, v21
    v_lshrrev_b32 v18, 16, v18
    v_mul_u32_u24 v6, 44, v18
    v_lshl_add_u32 v6, v21, 2, v6
    v_add_u32 v20, {WBD}, v20
    v_add_u32 v6, {WBD}, v6
    v_cmp_gt_u32 vcc, 68, v0
    v_mov_b32 v18, {DUMP}
    v_cndmask_b32 v6, v18, v6, vcc
    v_lshlrev_b32 v21, 2, v2
    v_min_u32 v21, 44, v21
    v_add_u32 v21, {WBDZ}, v21
    ds_write_b32 v21, v30
    """)
    for i in range(40): e(f"v_mov_b32 v{72+i}, 0")
    vq.wait("P1")
    e("""
    v_xor_b32 v28, 0x80008000, v26
    v_xor_b32 v29, 0x80008000, v27
    ds_write2_b32 v20, v26, v28 offset0:0 offset1:10
    ds_write2_b32 v6, v27, v29 offset0:0 offset1:10
    """)
    stamp()
    def mf1(t, fill=()):
        fill=list(fill)
        for T in range(5):
            for n in range(2):
                e(f"v_mfma_f32_16x16x32_bf16 {q4(acc(T,n))}, {q4(wf(t%2,T))}, {q4(xf(t,n))}, {q4(acc(T,n))}")
            if fill: fill.pop(0)()
        for f in fill: f()
    for t in range(18):
        tags=[f"W{t}"]+([f"X{t//2}"] if t%2==0 else [])
        vq.wait(*tags, extra=" lgkmcnt(0)")
        e("s_barrier")
        if t==1: stamp()
        pg=t%5
        for T in range(5):
            e(f"ds_read_b64_tr_b16 {pr(wf(t%2,T))}, v{10+T} offset:{pg*8192}")
            e(f"ds_read_b64_tr_b16 {pr(wf(t%2,T)+2)}, v{10+T} offset:{pg*8192+1024}")
        if t%2==0:
            for ee in range(2):
                for n in range(2):
                    e(f"ds_read_b128 {q4(xf(t+ee,n))}, v{8+ee} offset:{((t//2)%2)*16384+n*2048}")
        fill=[]
        if t>=1:
            if t+4<18: fill.append(lambda t=t: dma_w(t+4))
            else:
                fill.append(lambda t=t: dma_q(2*(t-14))); fill.append(lambda t=t: dma_q(2*(t-14)+1))
        if t%2==1 and (t-1)//2+2<9: fill.append(lambda t=t: dma_x((t-1)//2+2))
        if t==12:
            def nl():
                e("global_load_dword v18, v30, s[40:41] sc1"); vq.add("NL")
            fill.append(nl)
        if t>=1: mf1(t-1, fill)
    e("s_waitcnt lgkmcnt(0)")
    mf1(17)
    stamp()
    def sa_addr():
        e(f"""
        v_lshl_add_u32 v20, v19, 2, v23
        v_and_b32 v21, 1, v24
        v_mul_u32_u24 v21, 40, v21
        v_add_u32 v21, {WBD}, v21
        v_mov_b32 v6, {WBDZ}
        v_mul_u32_u24 v3, 80, v20
        v_add_u32 v3, v3, v21
        v_add_u32 v4, {16*80}, v3
        v_add_u32 v5, {32*80}, v3
        v_cmp_gt_u32 vcc, 2, v24
        v_cmp_gt_u32 s[76:77], 2, v20
        v_cmp_gt_u32 s[78:79], 4, v20
        v_cndmask_b32 v3, v6, v3, vcc
        s_xnor_b64 s[76:77], s[76:77], vcc
        s_andn2_b64 s[78:79], s[78:79], vcc
        v_cndmask_b32 v4, v6, v4, s[76:77]
        v_cndmask_b32 v5, v6, v5, s[78:79]
        """)
    def sa_read():
        for t in range(5):
            e(f"ds_read_b64_tr_b16 {pr(32+4*t)}, v3 offset:{8*t}")
            e(f"ds_read_b64_tr_b16 {pr(34+4*t)}, v4 offset:{8*t}")
            e(f"ds_read_b64_tr_b16 {pr(52+2*t)}, v5 offset:{8*t}")
    sa_addr(); sa_read()
    e(f"""
    s_lshl_b32 s10, s6, 5
    v_add_u32 v20, s10, v22
    v_mul_u32_u24 v8, 168, v20
    v_mul_u32_u24 v21, 40, v19
    v_add_u32 v8, v8, v21
    v_mul_u32_u24 v9, 88, v20
    v_add_u32 v9, {VV}, v9
    v_mul_u32_u24 v21, 40, v19
    v_min_u32 v21, 48, v21
    v_add3_u32 v10, v9, v21, 32
    v_lshl_add_u32 v9, v19, 3, v9
    v_cmp_eq_u32 vcc, 0, v19
    v_mov_b32 v6, 0x3f80
    """)
    for n in range(2):
        for (src,dst) in [(acc(0,n),acc(0,n)),(acc(1,n),acc(0,n)+2),(acc(4,n),acc(4,n)),(acc(2,n),acc(2,n)),(acc(3,n),acc(2,n)+2)]:
            e(f"v_cvt_pk_bf16_f32 v{dst}, v{src}, v{src+1}")
            e(f"v_cvt_pk_bf16_f32 v{dst+1}, v{src+2}, v{src+3}")
    Z=[[80,84,96,100,64],[68,20,24,12,106]]
    Z=[[80,84,96,100,64],[68,20,24,112-112+12,0]]
    Z[1][4]=72
    e("s_waitcnt lgkmcnt(0)")
    def stage2(KB4,KB2,Zt):
        for t in range(5):
            e(f"v_mfma_f32_16x16x32_bf16 {q4(Zt[t])}, {q4(32+4*t)}, {q4(KB4)}, 0")
        for t in range(5):
            e(f"v_mfma_f32_16x16x16_bf16 {q4(Zt[t])}, {pr(52+2*t)}, {pr(KB2)}, {q4(Zt[t])}")
    return_state=dict()
    Z[1]=[68,72,88,92,76]
    Z[1]=[68,72,88,92,26]
    stage2(acc(0,0),acc(4,0),Z[0])
    for n in range(2):
        b=acc(2,n)
        e(f"ds_write_b64 v9, {pr(b)} offset:{n*16*88}")
        e(f"v_cndmask_b32 v{106+4*n}, v{acc(4,n)}, v{b+2}, vcc")
        e(f"v_cndmask_b32 v{107+4*n}, v{acc(4,n)+1}, v6, vcc")
        e(f"v_cndmask_b32 v{b+2}, v{b+2}, v6, vcc")
        e(f"ds_write_b64 v10, {pr(106+4*n)} offset:{n*16*88}")
        e(f"ds_write_b64 v9, {pr(b+2)} offset:{n*16*88+40}")
    e("s_waitcnt lgkmcnt(0)")
    stage2(acc(0,1),acc(4,1),Z[1])
    for n in range(2):
        Zt=Z[n]
        outs=[Zt[i//2]+(i%2) for i in range(9)]
        softmax(e,Zt,outs,62,12)
        e(f"v_mov_b32 v{Zt[4]+1}, 0")
        for t in range(5):
            e(f"ds_write_b64 v8, {pr(Zt[t])} offset:{n*16*168+8*t}")
    stamp()
    e(f"""
    v_and_b32 v20, 1, v19
    v_lshlrev_b32 v20, 4, v20
    v_lshl_add_u32 v20, v23, 2, v20
    v_lshrrev_b32 v21, 1, v19
    v_lshl_add_u32 v20, v21, 1, v20
    v_mul_u32_u24 v8, 168, v20
    v_lshl_add_u32 v8, v24, 3, v8
    s_lshr_b32 s10, s6, 1
    s_add_u32 s11, s6, s10
    s_lshl_b32 s12, s11, 5
    v_add_u32 v9, 64, v8
    v_add_u32 v8, s12, v8
    v_mul_u32_u24 v10, 88, v20
    v_add_u32 v10, {VV}, v10
    v_and_b32 v21, 1, v24
    v_lshl_add_u32 v11, v21, 3, v10
    v_add_u32 v11, 32, v11
    v_lshl_add_u32 v10, v24, 3, v10
    s_mul_i32 s13, s10, 48
    v_add_u32 v10, s13, v10
    s_waitcnt lgkmcnt(0)
    s_barrier
    """)
    def kvbuf(ks,i): return 32+16*ks+4*i
    for ks in range(4):
        for i,(ar,st) in enumerate([(10,88),(11,88),(8,168),(9,168)]):
            for ee in range(2):
                e(f"ds_read_b64_tr_b16 {pr(kvbuf(ks,i)+2*ee)}, v{ar} offset:{ee*st+ks*32*st}")
        if ks==1:
            e(f"""
            s_lshl_b32 s13, s5, 4
            s_add_u32 s13, s13, s4
            s_mul_i32 s14, s13, 3200
            s_lshl_b32 s74, s6, 9
            s_add_u32 s74, s74, s14
            v_lshl_add_u32 v12, v2, 3, s74
            s_lshl_b32 s74, s11, 7
            s_add_u32 s74, s74, s14
            s_add_u32 s74, s74, 2560
            v_lshl_add_u32 v13, v22, 3, s74
            v_mov_b32 v6, {BIG:#x}
            v_cmp_eq_u32 vcc, s10, v19
            v_lshrrev_b32 v20, 3, v22
            v_cndmask_b32 v13, v6, v13, vcc
            v_and_b32 v21, 7, v22
            v_lshlrev_b32 v21, 3, v21
            v_lshl_add_u32 v21, v19, 6, v21
            s_lshl_b32 s74, s10, 8
            s_add_u32 s74, s74, s14
            s_add_u32 s74, s74, 2048
            v_add_u32 v14, s74, v21
            v_cmp_eq_u32 vcc, s10, v20
            s_bitcmp0_b32 s6, 0
            s_cselect_b64 s[76:77], vcc, 0
            v_cndmask_b32 v14, v6, v14, s[76:77]
            s_add_u32 s74, s14, {2560+256}
            v_lshl_add_u32 v25, v22, 3, s74
            v_cmp_eq_u32 vcc, v19, v20
            s_cmp_eq_u32 s6, 1
            s_cselect_b64 s[76:77], vcc, 0
            v_cndmask_b32 v25, v6, v25, s[76:77]
            """)
    D=[96,100,104,108]
    for ks in range(4):
        e(f"s_waitcnt lgkmcnt({min(15,8*(3-ks))})")
        for di,(ai,bi) in enumerate([(0,2),(1,2),(0,3),(1,3)]):
            c = "0" if ks==0 else q4(D[di])
            e(f"v_mfma_f32_16x16x32_bf16 {q4(D[di])}, {q4(kvbuf(ks,ai))}, {q4(kvbuf(ks,bi))}, {c}")
    for di,off in enumerate([12,13,14,25]):
        e(f"v_cvt_pk_bf16_f32 v{D[di]}, v{D[di]}, v{D[di]+1}\nv_cvt_pk_bf16_f32 v{D[di]+1}, v{D[di]+2}, v{D[di]+3}")
        e(f"buffer_store_dwordx2 {pr(D[di])}, v{off}, s[52:55], 0 offen sc1"); vq.add("PS")
    vq.wait("Q7","NL")
    e("s_barrier")
    for t in range(8,18): dma_q(t)
    e("s_movk_i32 s77, 20000\nv_readfirstlane_b32 s9, v18\ns_cmp_lg_u32 s9, 0\ns_cbranch_scc1 B_nonce_ok")
    a.label("B_nonce_poll")
    e("""
    s_sleep 1
    global_load_dword v18, v30, s[40:41] sc1
    s_waitcnt vmcnt(0)
    v_readfirstlane_b32 s9, v18
    s_sub_u32 s77, s77, 1
    s_cbranch_scc1 B_nonce_ok
    s_cmp_eq_u32 s9, 0
    s_cbranch_scc1 B_nonce_poll
    """)
    a.label("B_nonce_ok")
    e(f"""
    s_lshl_b32 s74, s13, 7
    s_lshl_b32 s75, s6, 2
    s_add_u32 s74, s74, s75
    s_add_u32 s74, s74, {WS_F1:#x}
    v_mov_b32 v20, s74
    v_mov_b32 v21, s9
    """)
    vq.wait("PS")
    e("s_mov_b64 exec, 1\nbuffer_store_dword v21, v20, s[52:55], 0 offen sc1\ns_mov_b64 exec, -1"); vq.add("F1")
    stamp()
    def qf(b,T): return 32+12*b+4*T
    def qacc(T,n): return 72+8*T+4*n
    def qreads(t):
        base = qloc(t)-WRING if t<10 else qloc(t)
        for T in range(3):
            e(f"ds_read_b64_tr_b16 {pr(qf(t%2,T))}, v{15+T} offset:{base}")
            e(f"ds_read_b64_tr_b16 {pr(qf(t%2,T)+2)}, v{15+T} offset:{base+512}")
    e(f"""
    s_lshl_b32 s74, s5, 11
    s_add_u32 s74, s74, {WS_F1:#x}
    v_lshrrev_b32 v20, 2, v2
    v_lshlrev_b32 v20, 7, v20
    v_lshl_add_u32 v20, v24, 2, v20
    v_add_u32 v20, s74, v20
    s_mul_i32 s74, s5, {16*3200}
    s_lshl_b32 s75, s6, 9
    s_add_u32 s74, s74, s75
    v_and_b32 v8, 31, v2
    v_lshl_add_u32 v8, v8, 4, s74
    v_lshrrev_b32 v21, 5, v2
    v_mul_u32_u24 v21, 3200, v21
    v_add_u32 v8, v8, v21
    v_and_b32 v21, 31, v2
    v_lshl_add_u32 v21, v21, 4, s75
    v_cmp_gt_u32 vcc, {3200-2048}, v21
    v_mov_b32 v6, {BIG:#x}
    v_cndmask_b32 v9, v6, v8, vcc
    """)
    qreads(0)
    for t in range(18):
        if t+1<18:
            if t+1==8:
                vq.wait("Q17"); e("s_barrier")
            if t+1==10:
                for T in range(3): e(f"v_subrev_u32 v{15+T}, {WRING}, v{15+T}")
            if t+1==14:
                e("buffer_load_dword v21, v20, s[52:55], 0 offen sc1")
            qreads(t+1)
            e("s_waitcnt lgkmcnt(6)")
        else: e("s_waitcnt lgkmcnt(0)")
        for T in range(3):
            for n in range(2):
                c = "0" if t==0 else q4(qacc(T,n))
                e(f"v_mfma_f32_16x16x32_bf16 {q4(qacc(T,n))}, {q4(qf(t%2,T))}, {q4(xf(t,n))}, {c}")
    sa_read()
    PL=160
    def ploads():
        e("s_mov_b32 s74, 0")
        for p in range(8):
            e(f"buffer_load_dwordx4 {q4(PL+8*p)}, v8, s[52:55], s74 offen sc1")
            e(f"buffer_load_dwordx4 {q4(PL+8*p+4)}, v9, s[52:55], s74 offen offset:2048 sc1")
            if p<7: e("s_add_u32 s74, s74, 6400")
    e("""
    s_waitcnt vmcnt(0)
    v_cmp_ne_u32 vcc, s9, v21
    s_mov_b32 s10, 0
    s_cbranch_vccnz B_early_skip
    s_mov_b32 s10, 1
    """)
    ploads()
    a.label("B_early_skip")
    for n in range(2):
        for (src,dst) in [(qacc(0,n),qacc(0,n)),(qacc(1,n),qacc(0,n)+2),(qacc(2,n),qacc(2,n))]:
            e(f"v_cvt_pk_bf16_f32 v{dst}, v{src}, v{src+1}")
            e(f"v_cvt_pk_bf16_f32 v{dst+1}, v{src+2}, v{src+3}")
    e("s_waitcnt lgkmcnt(0)")
    ZQ=[[112+4*t for t in range(5)],[132+4*t for t in range(5)]]
    PQ=[232,244]
    for n in range(2): stage2(qacc(0,n),qacc(2,n),ZQ[n])
    e(f"""
    v_lshrrev_b32 v25, 3, v22
    v_and_b32 v26, 1, v19
    v_cmp_eq_u32 vcc, v25, v26
    v_and_b32 v25, 1, v22
    v_lshlrev_b32 v25, 4, v25
    v_mov_b32 v26, 0x3f80
    v_lshlrev_b32 v26, v25, v26
    v_cndmask_b32 v26, 0, v26, vcc
    v_bfe_u32 v25, v22, 1, 2
    """)
    for d in range(4):
        e(f"v_cmp_eq_u32 vcc, {d}, v25\nv_cndmask_b32 v{64+d}, 0, v26, vcc")
    for n in range(2):
        softmax(e,ZQ[n],[PQ[n]+i for i in range(9)],62,12)
        e(f"v_mov_b32 v{PQ[n]+9}, 0")
    stamp()
    e("s_cmp_eq_u32 s10, 1\ns_cbranch_scc1 B_h1_have\ns_movk_i32 s77, 20000")
    a.label("B_h1_poll")
    e("""
    buffer_load_dword v21, v20, s[52:55], 0 offen sc1
    s_waitcnt vmcnt(0)
    v_cmp_ne_u32 vcc, s9, v21
    s_cbranch_vccz B_h1_done
    s_sleep 1
    s_sub_u32 s77, s77, 1
    s_cbranch_scc0 B_h1_poll
    """)
    a.label("B_h1_done")
    ploads()
    a.label("B_h1_have")
    stamp()
    e(f"""
    v_lshrrev_b32 v25, 1, v19
    v_lshlrev_b32 v25, 5, v25
    v_lshl_add_u32 v25, v22, 1, v25
    v_and_b32 v26, 1, v19
    v_add_u32 v25, v25, v26
    v_and_b32 v26, 15, v25
    s_lshl_b32 s74, s11, 4
    v_add_u32 v26, s74, v26
    v_mul_u32_u24 v10, 56, v26
    v_lshrrev_b32 v26, 4, v25
    v_lshl_add_u32 v10, v26, 3, v10
    v_add_u32 v10, {KVBD}, v10
    v_lshrrev_b32 v26, 5, v25
    v_and_b32 v27, 7, v25
    v_lshl_add_u32 v26, v26, 3, v27
    v_mul_u32_u24 v11, 56, v26
    v_bfe_u32 v26, v25, 3, 2
    v_lshl_add_u32 v11, v26, 3, v11
    v_add_u32 v11, {KVBD+32*56}, v11
    v_mov_b32 v6, {DUMP}
    s_cmp_eq_u32 s6, 0
    s_cselect_b64 vcc, -1, 0
    v_cndmask_b32 v11, v6, v11, vcc
    s_sub_u32 s74, s6, 1
    s_lshl_b32 s74, s74, 6
    v_add_u32 v25, s74, v25
    v_mul_u32_u24 v14, 56, v25
    v_add_u32 v14, {KVBD+32}, v14
    v_cmp_gt_u32 vcc, 80, v25
    v_cmp_gt_u32 s[76:77], 40, v25
    v_cndmask_b32 v14, v6, v14, vcc
    """)
    OAD=[3,4,5,7]
    e(f"""
    v_mul_u32_u24 v20, 20, v19
    v_add_u32 v20, v20, v23
    v_mul_u32_u24 v20, 56, v20
    v_add_u32 v20, {KVBD}, v20
    v_cmp_gt_u32 s[78:79], 2, v19
    """)
    for T in range(3):
        if T<2: e(f"v_lshl_add_u32 v21, v24, 1, {T}")
        else: e("v_mov_b32 v21, 8")
        e(f"""
        v_cmp_lt_u32 vcc, 4, v21
        v_subrev_u32 v25, 5, v21
        v_cndmask_b32 v26, v21, 6, vcc
        v_cndmask_b32 v27, 6, v25, vcc
        v_cmp_eq_u32 vcc, 4, v21
        v_cndmask_b32 v27, v27, 4, vcc
        v_cndmask_b32 v26, v27, v26, s[78:79]
        v_lshl_add_u32 v{OAD[T]}, v26, 3, v20
        """)
    e("v_add_u32 v7, 40, v20\nv_mov_b32 v52, 0\nv_mov_b32 v53, 0")
    for p in range(8):
        for c in range(2):
            e(f"s_waitcnt vmcnt({15-2*p-c})")
            cc = "0" if p==0 else q4(32+4*c)
            e(f"v_mfma_f32_16x16x32_bf16 {q4(32+4*c)}, v[64:67], {q4(PL+8*p+4*c)}, {cc}")
    e(f"""
    v_cvt_pk_bf16_f32 v40, v32, v33
    v_cvt_pk_bf16_f32 v41, v34, v35
    ds_write_b64 v10, v[40:41]
    v_cvt_pk_bf16_f32 v42, v36, v37
    v_cvt_pk_bf16_f32 v43, v38, v39
    ds_write_b64 v11, v[42:43]
    v_cndmask_b32 v44, 0, v42, s[76:77]
    v_cndmask_b32 v45, v43, 0, s[76:77]
    v_cndmask_b32 v46, 0, v43, s[76:77]
    v_cndmask_b32 v47, v42, 0, s[76:77]
    ds_write2_b64 v14, v[44:45], v[46:47] offset0:0 offset1:1
    ds_write_b64 v14, v[52:53] offset:16
    s_waitcnt lgkmcnt(0)
    s_barrier
    """)
    def oa(T): return 112+12*T
    order=(3,0,1,2)
    for i in range(5):
        for T in order:
            e(f"ds_read_b64_tr_b16 {pr(oa(T)+2*i)}, v{OAD[T]} offset:{56*4*i}")
    def od(T,n): return 32+16*n+4*T
    e(f"""
    s_lshl_b32 s74, s4, 3
    s_lshl_b32 s75, s6, 1
    s_add_u32 s74, s74, s75
    s_mul_i32 s74, s74, 18432
    s_add_u32 s74, s74, {WS_O:#x}
    s_lshl_b32 s75, s5, 10
    s_add_u32 s75, s75, s74
    v_lshl_add_u32 v8, v2, 4, s75
    s_lshl_b32 s75, s5, 7
    s_add_u32 s75, s75, s74
    s_add_u32 s75, s75, 16384
    v_lshl_add_u32 v9, v2, 3, s75
    v_mov_b32 v6, {BIG:#x}
    v_cmp_gt_u32 vcc, 16, v2
    v_cmp_gt_u32 s[76:77], 3, v19
    v_cndmask_b32 v9, v6, v9, vcc
    s_movk_i32 s75, 18432
    """)
    e("s_waitcnt lgkmcnt(12)")
    for n in range(2):
        for T in order:
            e(f"v_mfma_f32_16x16x32_bf16 {q4(od(T,n))}, {q4(oa(T))}, {q4(PQ[n])}, 0")
    e("s_waitcnt lgkmcnt(4)")
    for n in range(2):
        for T in order:
            e(f"v_mfma_f32_16x16x32_bf16 {q4(od(T,n))}, {q4(oa(T)+4)}, {q4(PQ[n]+4)}, {q4(od(T,n))}")
    e("s_waitcnt lgkmcnt(0)")
    for n in range(2):
        for T in order:
            e(f"v_mfma_f32_16x16x16_bf16 {q4(od(T,n))}, {pr(oa(T)+8)}, {pr(PQ[n]+8)}, {q4(od(T,n))}")
    for n in range(2):
        d3=od(3,n)
        e(f"""
        v_add_f32 v{d3}, 0x358637bd, v{d3}
        v_add_f32 v{d3+2}, 0x358637bd, v{d3+2}
        v_rcp_f32 v{d3}, v{d3}
        v_rcp_f32 v{d3+2}, v{d3+2}
        v_cndmask_b32 v64, v{d3+2}, v{d3}, s[76:77]
        v_cndmask_b32 v66, v{d3+2}, v{d3}, s[78:79]
        """)
        for i in range(12):
            sc = 64 if i<2 else (66 if i<8 else d3+2)
            e(f"v_mul_f32 v{od(0,n)+i}, v{od(0,n)+i}, v{sc}")
        o=72+8*n
        for i in range(6):
            src=od(0,n)+2*i
            e(f"v_cvt_pk_bf16_f32 v{o+i}, v{src}, v{src+1}")
        so="0" if n==0 else "s75"
        e(f"buffer_store_dwordx4 {q4(o)}, v8, s[52:55], {so} offen sc1")
        e(f"buffer_store_dwordx2 {pr(o+4)}, v9, s[52:55], {so} offen sc1")
    e(f"""
    s_lshl_b32 s74, s4, 2
    s_add_u32 s74, s74, s6
    s_lshl_b32 s74, s74, 4
    s_add_u32 s74, s74, s5
    s_lshl_b32 s74, s74, 7
    s_add_u32 s74, s74, {WS_F2:#x}
    v_mov_b32 v16, s74
    v_mov_b32 v17, s9
    s_mov_b32 s10, 1
    """)
    a.label("P5_entry")
    e(f"""
    s_mov_b32 s60, s36
    s_mov_b32 s61, s37
    s_mov_b32 s62, {576*1152}
    s_mov_b32 s63, 0x00020000
    v_lshrrev_b32 v25, 3, v2
    v_and_b32 v29, 1, v19
    v_lshlrev_b32 v26, 1, v29
    s_lshl_b32 s74, s15, 2
    v_or_b32 v26, s74, v26
    v_and_b32 v27, 7, v2
    v_xor_b32 v26, v26, v27
    s_lshl_b32 s75, s8, 7
    v_lshl_add_u32 v26, v26, 4, s75
    s_lshl_b32 s74, s6, 3
    v_add_u32 v3, s74, v25
    v_mul_u32_u24 v3, 1152, v3
    v_add_u32 v3, v3, v26
    v_lshrrev_b32 v27, 2, v25
    s_lshl_b32 s74, s6, 1
    v_add_u32 v27, s74, v27
    v_mul_u32_u24 v27, 36, v27
    v_and_b32 v28, 3, v25
    v_add3_u32 v27, v27, v28, 32
    v_mul_u32_u24 v4, 1152, v27
    v_add_u32 v4, v4, v26
    s_mov_b32 s74, 0
    """)
    for K in range(18):
        e(f"s_add_u32 m0, s71, {K*4096}")
        if K==16: e("s_mov_b32 s74, 0")
        e(f"buffer_load_dwordx4 v{3 if K<16 else 4}, s[60:63], s74 offen lds")
        e(f"s_add_u32 s74, s74, {36*1152 if K<16 else 8*36*1152}")
        if K==opts.get("flagK",5):
            e(f"""
            s_cmp_eq_u32 s10, 0
            s_cbranch_scc1 P5_noflag
            s_waitcnt vmcnt({K+1})
            s_mov_b64 exec, 1
            buffer_store_dword v17, v16, s[52:55], 0 offen sc1
            s_mov_b64 exec, -1
            """)
            a.label("P5_noflag")
            stamp()
    e(f"""
    v_lshl_add_u32 v28, v19, 3, v23
    v_lshrrev_b32 v21, 1, v23
    v_lshl_or_b32 v21, v29, 1, v21
    v_lshlrev_b32 v21, 1, v21
    """)
    for T in range(4):
        e(f"v_add_u32 v6, {4*T}, v24")
        traddr(10+T, 6, 21, 7, 0)
    e(f"""
    s_lshl_b32 s74, s7, 2
    s_add_u32 s74, s74, s6
    s_lshr_b32 s75, s74, 1
    s_lshl_b32 s75, s75, 11
    s_add_u32 s75, s75, {WS_F2:#x}
    v_lshl_add_u32 v20, v22, 7, s75
    s_mul_i32 s75, s74, 18432
    s_add_u32 s75, s75, {WS_O:#x}
    v_lshl_add_u32 v8, v2, 4, s75
    v_lshlrev_b32 v9, 8, v19
    v_lshl_add_u32 v9, v22, 3, v9
    s_add_u32 s75, s75, 16384
    v_add_u32 v9, s75, v9
    s_lshl_b32 s74, s74, 4
    v_add_u32 v25, s74, v22
    v_mul_u32_u24 v25, 2304, v25
    s_lshl_b32 s75, s8, 7
    s_add_u32 s75, s75, 1152
    v_add_u32 v25, s75, v25
    v_lshl_add_u32 v25, v29, 5, v25
    v_lshrrev_b32 v27, 1, v19
    v_lshl_add_u32 v25, v27, 4, v25
    s_waitcnt vmcnt(0)
    s_barrier
    """)
    stamp()
    NPRE=opts.get("npre",4)
    def gf(K,T):
        return (184+16*K+4*T) if K<NPRE else (32+16*(K%2)+4*T)
    def greads(K):
        for T in range(4):
            if K==16:
                e(f"v_add_u32 v{10+T}, 0x10000, v{10+T}")
            off=(K%16)*4096
            e(f"ds_read_b64_tr_b16 {pr(gf(K,T))}, v{10+T} offset:{off}")
            e(f"ds_read_b64_tr_b16 {pr(gf(K,T)+2)}, v{10+T} offset:{off+512}")
        return 8
    for K in range(NPRE+1): greads(K)
    e("s_movk_i32 s77, 30000")
    a.label("B_h2_poll")
    e("""
    buffer_load_dword v21, v20, s[52:55], 0 offen sc1
    s_waitcnt vmcnt(0)
    v_cmp_ne_u32 vcc, s9, v21
    s_cbranch_vccz B_h2_done
    s_sleep 2
    s_sub_u32 s77, s77, 1
    s_cbranch_scc0 B_h2_poll
    """)
    a.label("B_h2_done")
    stamp()
    vq.q=[]
    def of(K): return 112+4*K
    e("s_movk_i32 s74, 4096\ns_movk_i32 s75, 8192\ns_movk_i32 s76, 12288")
    for K in range(16):
        so=["0","s74","s75","s76"][K//4]
        e(f"buffer_load_dwordx4 {q4(of(K))}, v8, s[52:55], {so} offen offset:{(K%4)*1024} sc1"); vq.add(f"O{K}")
    for kk in range(2):
        for h in range(2):
            e(f"buffer_load_dwordx2 {pr(of(16+kk)+2*h)}, v9, s[52:55], 0 offen offset:{kk*1024+h*128} sc1"); vq.add(f"O{16+kk}")
    GA=[72+4*T for T in range(4)]
    for K in range(18):
        n = greads(K+1) if (K+1<18 and K+1>NPRE) else 0
        vq.wait(f"O{K}", extra=f" lgkmcnt({n})")
        for T in range(4):
            c = "0" if K==0 else q4(GA[T])
            e(f"v_mfma_f32_16x16x32_bf16 {q4(GA[T])}, {q4(gf(K,T))}, {q4(of(K))}, {c}")
    for T in range(4):
        e(f"v_cvt_pk_bf16_f32 v{96+2*T}, v{GA[T]}, v{GA[T]+1}\nv_cvt_pk_bf16_f32 v{97+2*T}, v{GA[T]+2}, v{GA[T]+3}")
    for p in range(2):
        e(f"v_permlane16_swap_b32 v{96+4*p}, v{98+4*p}\nv_permlane16_swap_b32 v{97+4*p}, v{99+4*p}")
        e(f"buffer_store_dwordx4 {q4(96+4*p)}, v25, s[56:59], 0 offen offset:{64*p}")
    if opts.get("stamps"):
        e("s_waitcnt vmcnt(0)")
        stamp()
        e(f"""
        v_writelane_b32 v31, s82, 20
        s_memtime s[86:87]
        s_waitcnt lgkmcnt(0)
        s_sub_u32 s86, s86, s84
        v_writelane_b32 v31, s86, 21
        s_getreg_b32 s86, hwreg(HW_REG_HW_ID)
        s_getreg_b32 s87, hwreg(HW_REG_XCC_ID)
        v_writelane_b32 v31, s86, 22
        v_writelane_b32 v31, s87, 23
        """)
        if opts.get("dbgt")=="B":
            e(f"""
            v_writelane_b32 v31, s82, 14
            v_subrev_u32 v21, s9, v31
            v_add_u32 v21, 1000, v21
            v_cmp_ne_u32 vcc, 0, v31
            v_cndmask_b32 v21, 0, v21, vcc
            v_lshlrev_b32 v20, 2, v2
            v_add_u32 v20, 4, v20
            s_mov_b64 exec, 0x7fff
            global_atomic_umax v20, v21, s[40:41] sc1
            s_mov_b64 exec, -1
            """)
        e(f"""
        s_lshl_b32 s74, s2, 2
        s_add_u32 s74, s74, s6
        s_lshl_b32 s74, s74, 8
        s_add_u32 s74, s74, {WS_DBG:#x}
        v_lshl_add_u32 v20, v2, 2, s74
        buffer_store_dword v31, v20, s[52:55], 0 offen
        """)
    e("s_endpgm")
    a.label("O_entry")
    e(f"""
    s_sub_u32 s3, s2, {opts["NA"]+256}
    s_and_b32 s10, s3, 7
    s_lshr_b32 s11, s3, 3
    s_lshl_b32 s7, s10, 2
    s_add_u32 s7, s7, s11
    s_mov_b32 s8, 8
    v_lshrrev_b32 v1, 6, v0
    v_and_b32 v2, 63, v0
    v_readfirstlane_b32 s6, v1
    v_lshrrev_b32 v19, 4, v2
    v_and_b32 v22, 15, v2
    v_bfe_u32 v23, v2, 2, 2
    v_and_b32 v24, 3, v2
    v_mov_b32 v30, 0
    v_mov_b32 v31, 0
    v_mov_b32 v16, 0
    v_mov_b32 v17, 0
    s_and_b32 s15, s6, 1
    s_lshl_b32 s71, s6, 10
    s_waitcnt lgkmcnt(0)
    s_mov_b32 s52, s42
    s_mov_b32 s53, s43
    s_mov_b32 s54, 0x1000000
    s_mov_b32 s55, 0x00020000
    s_mov_b32 s56, s38
    s_mov_b32 s57, s39
    s_mov_b32 s58, {2048*2304}
    s_mov_b32 s59, 0x00020000
    s_movk_i32 s77, 20000
    """)
    a.label("O_nonce_poll")
    e("""
    s_sleep 16
    global_load_dword v18, v30, s[40:41] sc1
    s_waitcnt vmcnt(0)
    v_readfirstlane_b32 s9, v18
    s_sub_u32 s77, s77, 1
    s_cbranch_scc1 O_nonce_ok
    s_cmp_eq_u32 s9, 0
    s_cbranch_scc1 O_nonce_poll
    """)
    a.label("O_nonce_ok")
    e("s_mov_b32 s10, 0\ns_branch P5_entry")
```
